```python
import torch

def _softmax(x, axis=-1):
    return torch.softmax(x, dim=axis)

def _gelu(x):
    return torch.nn.functional.gelu(x, approximate='tanh')

def _silu(x):
    return torch.nn.functional.silu(x)

def _sigmoid(x):
    return torch.sigmoid(x)

def _layernorm(x, axis=-1, eps=1e-05):
    m = x.mean(dim=axis, keepdim=True)
    v = x.var(dim=axis, keepdim=True, unbiased=False)
    return (x - m) / torch.sqrt(v + eps)

def _scatter_add(tgt, idx, src, axis=0):
    return tgt.clone().index_add_(axis, idx, src)

def _segment_sum(src, seg, n):
    out = torch.zeros((n,) + src.shape[1:], dtype=src.dtype)
    return out.index_add_(0, seg, src)

def _pad(x, pw):
    flat = tuple((v for pair in reversed(pw) for v in pair))
    return torch.nn.functional.pad(x, flat)
kernel_name = 'adaLN_cond__compressed_kv_cla__moe_arch_mod__prompt'

def setup_inputs():

    _w = lambda a: (lambda t: t.to(torch.bfloat16) if t.is_floating_point() else t)(torch.as_tensor(a))

    def _A_setup():
        B, H, Sq, Sk, D, M = (1, 32, 2048, 2048, 128, 640)
        Dc = 4 * D
        return {'x': _w((lambda *s: torch.randn(*s, dtype=torch.bfloat16) * 0.1)(B, Sq, M)), 'c_kv': _w((lambda *s: torch.randn(*s, dtype=torch.bfloat16) * 1.6)(B, Sk, Dc)), 'w_q': _w((lambda *s: torch.randn(*s, dtype=torch.bfloat16) * 0.8)(M, H, D) * M ** (-0.5)), 'w_uk': _w((lambda *s: torch.randn(*s, dtype=torch.bfloat16) * 0.8)(Dc, H, D) * Dc ** (-0.5)), 'w_uv': _w((lambda *s: torch.randn(*s, dtype=torch.bfloat16) * 1.6)(Dc, H, D) * Dc ** (-0.5)), 'w_o': _w((lambda *s: torch.randn(*s, dtype=torch.bfloat16) * 1.6)(H, D, M) * (H * D) ** (-0.5))}
    _A_in = _A_setup()

    def _B_setup():
        B, S, D, F, C = (1, 2048, 640, 1728, 8)
        return {'x': _w((lambda *s: torch.randn(*s, dtype=torch.bfloat16) * 0.1)(B, S, D)), 'w_r': _w((lambda *s: torch.randn(*s, dtype=torch.bfloat16) * 0.1)(D)), 'w_gate': _w((lambda *s: torch.randn(*s, dtype=torch.bfloat16) * 0.1)(D, F)), 'w_up': _w((lambda *s: torch.randn(*s, dtype=torch.bfloat16) * 0.1)(D, F)), 'w_down': _w((lambda *s: torch.randn(*s, dtype=torch.bfloat16) * 0.1)(F, D))}
    _B_in = _B_setup()
    return {'A_x': _A_in['x'], 'A_c_kv': _A_in['c_kv'], 'A_w_q': _A_in['w_q'], 'A_w_uk': _A_in['w_uk'], 'A_w_uv': _A_in['w_uv'], 'A_w_o': _A_in['w_o'], 'B_x': _B_in['x'], 'B_w_r': _B_in['w_r'], 'B_w_gate': _B_in['w_gate'], 'B_w_up': _B_in['w_up'], 'B_w_down': _B_in['w_down'], 'c': _w((lambda *s: torch.randn(*s, dtype=torch.bfloat16) * 0.2)(1, 640) * 8.0), 'w_mod': _w((lambda *s: torch.randn(*s, dtype=torch.bfloat16) * 0.2)(640, 6 * 640) * 640 ** (-0.5) * 8.0)}

def reference(A_x, A_c_kv, A_w_q, A_w_uk, A_w_uv, A_w_o, B_x, B_w_r, B_w_gate, B_w_up, B_w_down, c, w_mod):

    def _A_ref(x, c_kv, w_q, w_uk, w_uv, w_o):
        B, Sq, M = (x.shape[0], x.shape[1], x.shape[2])
        Sk = c_kv.shape[1]
        H, D = (w_q.shape[1], w_q.shape[2])
        q = torch.einsum('bqm,mhd->bhqd', x, w_q)
        k = torch.einsum('bkc,chd->bhkd', c_kv, w_uk)
        v = torch.einsum('bkc,chd->bhkd', c_kv, w_uv)
        scores = torch.einsum('bhqd,bhkd->bhqk', q, k) * D ** (-0.5)
        off = Sk - Sq
        qi = torch.arange(Sq)[:, None]
        kj = torch.arange(Sk)[None, :]
        cmask = kj <= qi + off
        scores = torch.where(cmask[None, None], scores, -1000000000.0)
        p = _softmax(scores, axis=-1)
        ctx = torch.einsum('bhqk,bhkd->bhqd', p, v)
        return torch.einsum('bhqd,hdm->bqm', ctx, w_o)

    def _B_ref(x, w_r, w_gate, w_up, w_down):
        B, S, D = x.shape
        C = 8
        r = x @ w_r
        idx = torch.argsort(-r, axis=-1)[:, :C]
        idx_e = (lambda x, n, axis: torch.repeat_interleave(x, n, dim=axis))(idx.reshape(B, C, 1), D, axis=2)
        x_sel = (lambda x, i, axis: torch.take_along_dim(x, i, dim=axis))(x, idx_e, axis=1)
        g = _silu(x_sel @ w_gate)
        u = x_sel @ w_up
        y = g * u @ w_down
        r_sel = _sigmoid((lambda x, i, axis: torch.take_along_dim(x, i, dim=axis))(r, idx, axis=1))
        y = y * r_sel.reshape(B, C, 1)
        b_off = (torch.arange(B) * S).reshape(B, 1)
        flat_idx = (idx + b_off).reshape(B * C)
        zero = (x * 0.0).reshape(B * S, D)
        upd = _scatter_add(zero, flat_idx, y.reshape(B * C, D), axis=0)
        return x + upd.reshape(B, S, D)
    x = A_x
    mod = (_silu(c) @ w_mod).reshape(c.shape[0], 6, 1, -1)
    sa, ca, ga, sb, cb, gb = (mod[:, 0].clone(), mod[:, 1].clone(), mod[:, 2].clone(), mod[:, 3].clone(), mod[:, 4].clone(), mod[:, 5].clone())
    h = _layernorm(x, axis=-1) * (1 + ca) + sa
    x = x + ga * _A_ref(h, A_c_kv, A_w_q, A_w_uk, A_w_uv, A_w_o)
    h = _layernorm(x, axis=-1) * (1 + cb) + sb
    x = x + gb * _B_ref(h, B_w_r, B_w_gate, B_w_up, B_w_down)
    return x
```

```python
import re

TRANS = ('v_exp_f32', 'v_log_f32', 'v_rcp_f32', 'v_rsq_f32', 'v_sqrt_f32', 'v_sin_f32', 'v_cos_f32', 'v_rcp_iflag_f32')

def regs_of(tok):
    tok = tok.strip()
    neg = tok.lstrip('-').strip('|')
    m = re.fullmatch(r'([vas])(\d+)', neg)
    if m:
        return [m.group(1) + m.group(2)]
    m = re.fullmatch(r'([vas])\[(\d+):(\d+)\]', neg)
    if m:
        return [m.group(1) + str(i) for i in range(int(m.group(2)), int(m.group(3)) + 1)]
    if neg in ('vcc', 'vcc_lo', 'vcc_hi'):
        return ['vcc']
    if neg in ('exec', 'exec_lo', 'exec_hi'):
        return ['exec']
    if neg == 'm0':
        return ['m0']
    if neg == 'scc':
        return ['scc']
    return []

class Ins:
    __slots__ = ('text', 'op', 'kind', 'rd', 'wr', 'ws', 'srcc', 'ab', 'passes', 'dpp', 'label', 'target', 'data', 'wide', 'opsel', 'mask_rd', 'sreg_rd', 'vm', 'lg')
    def __init__(self, text):
        self.text = text
        self.rd = set(); self.wr = set(); self.ws = 1
        self.srcc = None; self.ab = set(); self.passes = 0; self.dpp = False
        self.label = None; self.target = None; self.data = set(); self.wide = False; self.opsel = False
        self.vm = None; self.lg = None
        parse(self)

def split_ops(s):
    out = []; depth = 0; cur = ''
    for ch in s:
        if ch == '[': depth += 1
        if ch == ']': depth -= 1
        if ch == ',' and depth == 0:
            out.append(cur.strip()); cur = ''
        else:
            cur += ch
    if cur.strip(): out.append(cur.strip())
    return out

def parse(I):
    t = I.text.split(';')[0].strip()
    if t.endswith(':'):
        I.kind = 'label'; I.label = t[:-1]; I.op = ''; I.ws = 0; return
    parts = t.split(None, 1)
    op = parts[0]; I.op = op
    rest = parts[1] if len(parts) > 1 else ''
    ops = split_ops(rest)
    mods = ''
    if ops:
        last = ops[-1].split(None, 1)
        if len(last) > 1:
            ops[-1] = last[0]; mods = last[1]
    R = lambda i: regs_of(ops[i]) if i < len(ops) else []
    allr = lambda a: [r for i in range(a, len(ops)) for r in R(i)]
    if op == 's_nop':
        I.kind = 'nop'; I.ws = int(ops[0]) + 1; return
    if op == 's_waitcnt':
        I.kind = 'wait'
        m = re.search(r'vmcnt\((\d+)\)', t); I.vm = int(m.group(1)) if m else None
        m = re.search(r'lgkmcnt\((\d+)\)', t); I.lg = int(m.group(1)) if m else None
        return
    if op in ('s_barrier', 's_endpgm', 's_setprio', 's_sleep'):
        I.kind = 'other'; return
    if op.startswith('s_cbranch') or op == 's_branch':
        I.kind = 'branch'; I.target = ops[0]
        if 'vcc' in op: I.rd.add('vcc')
        if 'exec' in op: I.rd.add('exec')
        return
    if op.startswith('s_load') or op.startswith('s_buffer_load') or op.startswith('s_mem'):
        I.kind = 'smem'; I.wr.update(R(0)); I.rd.update(allr(1)); return
    if op.startswith('s_cmp') or op.startswith('s_bitcmp'):
        I.kind = 'salu'; I.rd.update(allr(0)); return
    if op.startswith('s_'):
        I.kind = 'salu'; I.wr.update(R(0)); I.rd.update(allr(1))
        if 'saveexec' in op: I.wr.add('exec'); I.rd.add('exec')
        return
    if op.startswith('v_mfma'):
        I.kind = 'mfma'; I.wr.update(R(0)); I.ab.update(R(1) + R(2)); I.srcc = tuple(R(3))
        I.rd.update(I.ab); I.rd.update(I.srcc)
        I.passes = 8 if '32x32' in op else 4
        return
    if op.startswith('buffer_') or op.startswith('global_'):
        lds = bool(re.search(r'\blds\b', mods)) or 'load_lds' in op
        if op in ('buffer_wbl2', 'buffer_inv'):
            I.kind = 'other'; return
        if lds:
            I.kind = 'vmem_lds'; I.rd.update(allr(0)); I.rd.add('m0'); return
        if 'store' in op:
            I.kind = 'vmem_store'; I.rd.update(allr(0))
            d = R(0) if op.startswith('buffer') else R(1)
            I.data.update(d); I.wide = len(d) >= 3
            return
        if 'atomic' in op:
            I.kind = 'vmem_load'; I.rd.update(allr(0))
            if 'sc0' in mods: I.wr.update(R(0))
            return
        I.kind = 'vmem_load'; I.wr.update(R(0)); I.rd.update(allr(1))
        if 'd16' in op: I.rd.update(R(0))
        return
    if op.startswith('ds_'):
        if op.startswith('ds_read') or op.startswith('ds_bpermute') or op.startswith('ds_permute') or op.startswith('ds_swizzle'):
            I.kind = 'ds_read'; I.wr.update(R(0)); I.rd.update(allr(1))
        elif '_rtn' in op:
            I.kind = 'ds_read'; I.wr.update(R(0)); I.rd.update(allr(1))
        else:
            I.kind = 'ds_write'; I.rd.update(allr(0))
        return
    if op.startswith('v_'):
        base = re.sub(r'_(e32|e64|dpp|sdwa)$', '', op)
        I.kind = 'trans' if base in TRANS else 'valu'
        I.rd.add('exec')
        if op.endswith('_dpp') or re.search(r'row_|quad_perm|wave_', mods): I.dpp = True
        if 'op_sel' in mods and not base.startswith('v_pk_'): I.opsel = True
        if op.endswith('_sdwa'): I.opsel = True
        if base.startswith('v_cmpx'):
            I.wr.add('exec'); I.rd.update(allr(0)); return
        if base.startswith('v_cmp'):
            I.wr.update(R(0)); I.rd.update(allr(1)); return
        if 'permlane' in base and 'swap' in base:
            I.wr.update(R(0) + R(1)); I.rd.update(R(0) + R(1)); I.dpp = True; return
        if base in ('v_add_co_u32', 'v_sub_co_u32', 'v_subrev_co_u32', 'v_addc_co_u32', 'v_subb_co_u32', 'v_div_scale_f32', 'v_mad_u64_u32'):
            I.wr.update(R(0) + R(1)); I.rd.update(allr(2)); return
        I.wr.update(R(0)); I.rd.update(allr(1))
        if base in ('v_fmac_f32', 'v_mac_f32', 'v_dot2c_f32_bf16', 'v_pk_fmac_f16', 'v_writelane_b32') or I.dpp or I.opsel:
            I.rd.update(R(0))
        if base == 'v_cndmask_b32' and len(ops) == 3: I.rd.add('vcc')
        if base == 'v_div_fmas_f32': I.rd.add('vcc')
        return
    raise ValueError('unknown instruction: ' + I.text)

def isv(r): return r[0] in 'va' and r != 'vcc'
def iss(r): return (r[0] == 's' and r != 'scc') or r == 'vcc'

def need(P, C):
    n = 0
    pv = P.kind in ('valu', 'trans')
    cv = C.kind in ('valu', 'trans')
    if pv:
        wv = {r for r in P.wr if isv(r)}
        wsr = {r for r in P.wr if iss(r)}
        if C.kind == 'mfma' and wv & C.rd: n = max(n, 2)
        if P.kind == 'trans' and C.kind != 'trans' and wv & C.rd: n = max(n, 1)
        if cv and wsr & C.rd: n = max(n, 2)
        if cv and wsr & C.rd and ('readlane' in C.op or 'writelane' in C.op or 'div_fmas' in C.op): n = max(n, 4)
        if C.kind.startswith('vmem') and wsr & C.rd: n = max(n, 5)
        if cv and ('readfirstlane' in C.op or 'readlane' in C.op) and wv & C.rd: n = max(n, 1)
        if cv and C.dpp and wv & C.rd: n = max(n, 2)
        if 'exec' in P.wr:
            if cv and C.dpp: n = max(n, 5)
            if C.kind == 'mfma': n = max(n, 4)
            if cv and ('readfirstlane' in C.op or 'readlane' in C.op or 'writelane' in C.op): n = max(n, 4)
        if P.opsel and cv and wv & (C.rd | C.wr): n = max(n, 1)
        if P.op.startswith('v_dot') and wv & (C.rd | C.wr) and not (C.op == P.op and not (wv & (C.rd - C.wr))): n = max(n, 3)
    if P.kind == 'mfma':
        big = 12 if P.passes == 8 else 8
        D = P.wr
        if C.kind == 'mfma':
            if D & C.ab: n = max(n, big)
            if D & set(C.srcc):
                if not (set(C.srcc) == D and C.op == P.op): n = max(n, big - 2)
        elif cv:
            if D & (C.rd | C.wr): n = max(n, big)
            if set(P.srcc) & C.wr: n = max(n, 7 if P.passes == 8 else 3)
        elif C.kind.startswith('vmem') or C.kind.startswith('ds_'):
            if D & (C.rd | C.wr): n = max(n, big)
    if P.kind == 'salu' and 'm0' in P.wr and C.kind == 'vmem_lds': n = max(n, 1)
    if P.kind == 'vmem_store' and P.wide and P.data & C.wr:
        n = max(n, 2 if cv else 1)
    return n

WIN = 14

class Kernel:
    def __init__(self, name):
        self.name = name; self.ins = []
        self.uid = 0
    def __call__(self, text):
        for line in text.strip().split('\n'):
            line = line.strip()
            if not line or line.startswith(';'): continue
            self.ins.append(Ins(line))
    def lab(self, base):
        self.uid += 1
        return f'{self.name}_{base}_{self.uid}'
    def pad(self):
        changed = True
        rounds = 0
        while changed:
            changed = False; rounds += 1
            out = []
            for I in self.ins:
                if I.kind not in ('label', 'nop'):
                    req = self._req(out, I)
                    if req > 0:
                        self._emit_nop(out, req); changed = True
                out.append(I)
            self.ins = out
            labels = {I.label: i for i, I in enumerate(self.ins) if I.kind == 'label'}
            i = 0
            while i < len(self.ins):
                B = self.ins[i]
                if B.kind == 'branch':
                    tpos = labels[B.target]
                    pre = self.ins[max(0, i - WIN):i + 1]
                    worst = 0
                    seq = list(pre)
                    dist = 0
                    for C in self.ins[tpos:tpos + 2 * WIN]:
                        if C.kind not in ('label', 'nop'):
                            worst = max(worst, self._req(seq, C, only=len(pre)))
                        seq.append(C)
                        dist += C.ws
                        if dist > WIN or C.op in ('s_branch', 's_endpgm'): break
                    if worst > 0:
                        tmp = []
                        self._emit_nop(tmp, worst)
                        self.ins[i:i] = tmp
                        labels = {I.label: k for k, I in enumerate(self.ins) if I.kind == 'label'}
                        i += len(tmp); changed = True
                i += 1
            assert rounds < 20
    def _emit_nop(self, out, n):
        while n > 0:
            k = min(n, 16); out.append(Ins(f's_nop {k-1}')); n -= k
    def _req(self, seq, C, only=None):
        d = 0; req = 0
        for k in range(len(seq) - 1, -1, -1):
            P = seq[k]
            if P.op in ('s_branch', 's_endpgm') and not (only is not None and k == only - 1): break
            if only is None or k < only:
                n = need(P, C)
                if n - d > req: req = n - d
            d += P.ws
            if d > WIN: break
        return req
    def check_waits(self):
        errs = []
        labels = {I.label: i for i, I in enumerate(self.ins) if I.kind == 'label'}
        vm = []; lg = []
        taken = {}
        i = 0; steps = 0
        while i < len(self.ins):
            steps += 1
            I = self.ins[i]
            if I.kind == 'wait':
                if I.vm is not None: vm = vm[len(vm) - I.vm:] if I.vm < len(vm) else vm
                if I.lg is not None:
                    if any(k == 'smem' for k, _ in lg) and I.lg > 0:
                        pass
                    else:
                        lg = lg[len(lg) - I.lg:] if I.lg < len(lg) else lg
            else:
                use = I.rd | I.wr
                for k, d in vm + lg:
                    if d & use:
                        errs.append(f'{self.name}: outstanding load dest {sorted(d & use)[:4]} used by: {I.text} (idx {i})')
                        break
                if I.kind in ('vmem_load', 'vmem_store', 'vmem_lds'):
                    vm.append((I.kind, set(I.wr)))
                    if len(vm) > 63: errs.append(f'{self.name}: vmcnt overflow at {I.text}')
                elif I.kind in ('ds_read', 'ds_write', 'smem'):
                    lg.append((I.kind, set(I.wr)))
                if I.kind == 'branch':
                    t = labels[I.target]
                    if t < i and taken.get(i, 0) < 1:
                        taken[i] = taken.get(i, 0) + 1
                        i = t; continue
                    if I.op == 's_branch' and t > i:
                        pass
            i += 1
        seen = set(); out = []
        for e in errs:
            if e not in seen: seen.add(e); out.append(e)
        return out
    def maxreg(self, c):
        m = -1
        for I in self.ins:
            for r in I.rd | I.wr:
                if r[0] == c and r[1:].isdigit(): m = max(m, int(r[1:]))
        return m
    def text(self):
        return '\n'.join(('' if I.kind == 'label' else '  ') + I.text for I in self.ins)

HEADER = open('adaLN_cond__compressed_kv_cla__moe_arch_mod__prompt.s.ref').read().split('; Override launch')[0]

def build(kernels, launches, path):
    s = HEADER
    for (n, g, b, l) in launches:
        s += f'; @launch kernel={n} grid=({g},1,1) block=({b},1,1) lds={l}\n'
    s += '.amdgcn_target "amdgcn-amd-amdhsa--gfx950"\n.text\n'
    desc = ''
    for k in kernels:
        k.pad()
        for e in k.check_waits(): print('WAITCHK', e)
        s += f'.globl {k.name}\n.p2align 8\n.type {k.name},@function\n{k.name}:\n' + k.text() + '\n'
        nv = k.maxreg('v') + 1; na = k.maxreg('a') + 1; ns = k.maxreg('s') + 1
        acc = max(4, (nv + 3) // 4 * 4)
        tot = acc + na if na else nv
        desc += f'''.p2align 6
.amdhsa_kernel {k.name}
  .amdhsa_next_free_vgpr {max(tot,1)}
  .amdhsa_next_free_sgpr 102
  .amdhsa_accum_offset {acc}
  .amdhsa_group_segment_fixed_size 0
  .amdhsa_kernarg_size 128
  .amdhsa_user_sgpr_count 2
  .amdhsa_user_sgpr_kernarg_segment_ptr 1
  .amdhsa_system_sgpr_workgroup_id_x 1
.end_amdhsa_kernel
'''
        print(f'{k.name}: {len(k.ins)} instrs, vgpr {nv} agpr {na} sgpr {ns}')
    s += '.section .rodata,"a"\n' + desc
    open(path, 'w').write(s)
```

```python
from gen import *

class VM:
    def __init__(self): self.n = 0; self.tags = {}
    def issue(self, tag=None):
        self.n += 1
        if tag is not None: self.tags[tag] = self.n
    def cnt(self, tag):
        return self.n - self.tags[tag]

def stamp(k, i):
    if not OPT.get('stamp'): return
    k(f's_memtime s[{60+4*i}:{61+4*i}]')
    k(f's_memrealtime s[{62+4*i}:{63+4*i}]')
    k('s_waitcnt lgkmcnt(0)')

def stamp_out(k, n, wavereg):
    if not OPT.get('stamp'): return
    L = k.lab('ns')
    k('s_load_dwordx2 s[92:93], s[0:1], 112')
    k('s_waitcnt lgkmcnt(0)')
    k('s_mov_b32 s94, 256')
    k('s_mov_b32 s95, 0x00020000')
    k(f's_cmp_lg_u32 s2, {OPT.get("stampwg", 0)}')
    k(f's_cbranch_scc1 {L}')
    k(f's_cmp_lg_u32 {wavereg}, {OPT.get("stampwave", 0)}')
    k(f's_cbranch_scc1 {L}')
    k('v_mov_b32 v1, 0')
    for i in range(n):
        k(f'v_mov_b32 v2, s{60+4*i}')
        k(f'v_mov_b32 v3, s{62+4*i}')
        k(f'buffer_store_dwordx2 v[2:3], v1, s[92:95], 0 offen offset:{8*i}')
        k('s_nop 2')
    k(f'{L}:')

def interleave(k, mf, fill, per=None, start=0):
    fill = list(fill)
    n = len(mf)
    for i, m in enumerate(mf):
        k(m)
        if i < start: continue
        if per is not None:
            c = per
        else:
            c = -(-len(fill) // (n - i))
        for _ in range(c):
            if fill: k(fill.pop(0))
    for f in fill: k(f)

def k_kv():
    k = Kernel('kv_kernel')
    srds(k, [(4, A_CKV, 0, SIZES[A_CKV]), (8, A_WUK, 0, SIZES[A_WUK]), (12, A_WUV, 0, SIZES[A_WUV]),
             (16, WS, WS_KF, 1 << 24), (20, WS, WS_VF, 1 << 24)])
    guard(k, 256)
    stamp(k, 0)
    k('v_lshrrev_b32 v1, 6, v0')
    k('v_and_b32 v0, 63, v0')
    k('v_readfirstlane_b32 s24, v1')
    k('s_and_b32 s25, s2, 7')
    k('s_lshr_b32 s26, s2, 3')
    k('s_and_b32 s27, s26, 3')
    k('s_lshr_b32 s28, s26, 2')
    k('s_and_b32 s29, s27, 1')
    k('s_lshl_b32 s29, s29, 1')
    k('s_lshl_b32 s30, s25, 2')
    k('s_add_u32 s29, s29, s30')
    k('s_and_b32 s31, s24, 1')
    k('s_lshr_b32 s32, s24, 1')
    k('v_lshrrev_b32 v1, 2, v0')
    k('v_lshrrev_b32 v2, 4, v0')
    k('v_and_b32 v3, 3, v0')
    k('v_xor_b32 v4, v3, v2')
    k('s_lshl_b32 s33, s28, 8')
    k('s_lshl_b32 s34, s24, 5')
    k('s_add_u32 s33, s33, s34')
    k('v_add_u32 v5, s33, v1')
    k('v_lshlrev_b32 v5, 10, v5')
    k('v_lshl_add_u32 v10, v4, 4, v5')
    k('v_and_b32 v5, 3, v1')
    k('s_lshl_b32 s34, s24, 2')
    k('v_add_u32 v6, s34, v5')
    k('v_lshlrev_b32 v6, 13, v6')
    k('v_lshl_add_u32 v6, v2, 6, v6')
    k('v_lshl_add_u32 v6, v3, 4, v6')
    k('s_lshl_b32 s34, s29, 8')
    k('v_add_u32 v11, s34, v6')
    k('s_lshl_b32 s35, s24, 11')
    k('v_and_b32 v6, 31, v0')
    k('v_lshrrev_b32 v7, 5, v0')
    k('v_and_b32 v8, 3, v1')
    k('v_xor_b32 v8, v8, v7')
    k('s_lshl_b32 s34, s31, 7')
    k('v_add_u32 v9, s34, v6')
    k('v_lshlrev_b32 v9, 6, v9')
    k('v_lshl_add_u32 v12, v8, 4, v9')
    k('v_xor_b32 v13, 32, v12')
    k('v_add_u32 v14, 0x10000, v12')
    k('v_add_u32 v15, 0x10000, v13')
    k('v_lshlrev_b32 v9, 12, v7')
    k('v_lshl_add_u32 v9, v5, 6, v9')
    k('v_and_b32 v8, 1, v2')
    k('v_lshl_add_u32 v9, v8, 5, v9')
    k('v_lshl_add_u32 v9, v3, 3, v9')
    k('s_lshl_b32 s34, s32, 9')
    k('s_add_u32 s34, s34, 16384')
    k('v_add_u32 v16, s34, v9')
    k('v_add_u32 v17, 0x10000, v16')
    k('v_lshlrev_b32 v18, 4, v0')
    LV = k.lab('V')
    k('s_cmp_ge_u32 s27, 2')
    k(f's_cbranch_scc1 {LV}')
    ACC = 128
    SETS = [(64, 80), (88, 104)]
    def variant(isV):
        wsrd = 's[12:15]' if isV else 's[8:11]'
        vm = VM()
        def dma(st):
            sl = st & 3
            out = []
            for e in range(2):
                out.append([f's_add_u32 m0, s35, {sl*32768 + e*1024}', f's_mov_b32 s36, {st*64 + e*16384}',
                            f'buffer_load_dwordx4 v10, s[4:7], s36 offen lds'])
            for e in range(2):
                out.append([f's_add_u32 m0, s35, {sl*32768 + 16384 + e*1024}', f's_mov_b32 s36, {st*262144 + e*256}',
                            f'buffer_load_dwordx4 v11, {wsrd}, s36 offen lds'])
            return out
        def reads(st, ks, setn):
            sl = st & 3; c0, w0 = SETS[setn]
            hi = sl >> 1; so = (sl & 1) * 32768
            out = []
            va = (12 + ks) + 2 * hi
            vw = 16 + hi
            def wr(nb):
                for qd in range(2):
                    out.append(f'ds_read_b64_tr_b16 v[{w0+4*nb+2*qd}:{w0+4*nb+2*qd+1}], v{vw} offset:{so + (4*ks+qd)*2048 + nb*256}')
            def cr(kb):
                out.append(f'ds_read_b128 v[{c0+4*kb}:{c0+4*kb+3}], v{va} offset:{so + kb*2048}')
            wr(0); cr(0); cr(1); cr(2); cr(3); wr(1)
            return out
        def mfmas(setn, first):
            c0, w0 = SETS[setn]; out = []
            for nb in range(2):
                for kb in range(4):
                    a = ACC + 16 * (nb * 4 + kb)
                    W = f'v[{w0+4*nb}:{w0+4*nb+3}]'; C = f'v[{c0+4*kb}:{c0+4*kb+3}]'
                    A, B = (C, W) if isV else (W, C)
                    if OPT.get('kv16'):
                        o = 8 * setn
                        out.append(f'v_mfma_f32_16x16x32_bf16 v[{a+o}:{a+o+3}], {A}, {B}, ' + ('0' if first else f'v[{a+o}:{a+o+3}]') + '\n' +
                                   f'v_mfma_f32_16x16x32_bf16 v[{a+o+4}:{a+o+7}], {B}, {A}, ' + ('0' if first else f'v[{a+o+4}:{a+o+7}]'))
                    else:
                        out.append(f'v_mfma_f32_32x32x16_bf16 v[{a}:{a+15}], {A}, {B}, ' + ('0' if first else f'v[{a}:{a+15}]'))
            return out
        NS = OPT.get('kv_ns', 16)
        for st in range(4):
            for grp in dma(st):
                for s in grp: k(s)
                vm.issue(('d', st))
        k(f's_waitcnt vmcnt({vm.cnt(("d", 0))})')
        k('s_barrier')
        stamp(k, 1)
        for s in reads(0, 0, 0): k(s)
        for st in range(NS):
            k('s_waitcnt lgkmcnt(0)')
            interleave(k, mfmas(0, st == 0), reads(st, 1, 1), per=2)
            if st + 1 < NS:
                k(f's_waitcnt vmcnt({vm.cnt(("d", st+1))}) lgkmcnt(0)')
                k('s_barrier')
                fill = reads(st + 1, 0, 0)
                if st + 4 < NS:
                    for gi, grp in enumerate(dma(st + 4)):
                        if OPT.get('kv_skip', 0) >> (gi // 2) & 1:
                            vm.tags[('d', st + 4)] = vm.n; continue
                        fill += grp; vm.issue(('d', st + 4))
                interleave(k, mfmas(1, False), fill, per=3)
            else:
                k('s_waitcnt lgkmcnt(0)')
                interleave(k, mfmas(1, False), [])
        stamp(k, 2)
        k('s_lshr_b32 s34, s32, 1')
        k('s_add_u32 s34, s34, s29')
        k('s_lshl_b32 s34, s34, 19')
        k('s_lshl_b32 s36, s28, 3')
        k('s_lshl_b32 s37, s31, 2')
        k('s_add_u32 s36, s36, s37')
        k('s_lshl_b32 s36, s36, 13')
        k('s_add_u32 s34, s34, s36')
        k('s_and_b32 s36, s32, 1')
        k(f's_lshl_b32 s36, s36, {11 if isV else 12}')
        k('s_add_u32 s34, s34, s36')
        osrd = 's[20:23]' if isV else 's[16:19]'
        tr = 0
        for nb in range(2):
            for kb in range(4):
                a = ACC + 16 * (nb * 4 + kb)
                for tt in range(2):
                    d = 64 + 4 * (tr % 8); tr += 1
                    for j in range(4):
                        k(f'v_cvt_pk_bf16_f32 v{d+j}, v{a+8*tt+2*j}, v{a+8*tt+2*j+1}')
                    if isV: so, im = kb * 8192 + tt * 4096, nb * 1024
                    else: so, im = kb * 8192, nb * 2048 + tt * 1024
                    k(f's_add_u32 s36, s34, {so}')
                    if not OPT.get('kv_nostore') or tr < 2: k(f'buffer_store_dwordx4 v[{d}:{d+3}], v18, {osrd}, s36 offen offset:{im}')
        k('s_waitcnt vmcnt(0)')
        stamp(k, 3)
        stamp_out(k, 4, 's24')
        k('s_endpgm')
    variant(False)
    k(f'{LV}:')
    variant(True)
    return k, ('kv_kernel', 256, 512, 131072)

def kernels():
    ks = [k_kv()]
    try:
        import gen3
        ks += gen3.kernels()
    except ImportError:
        pass
    return ks
```

```python
from gen import *
from gen2 import VM, interleave, stamp, stamp_out
import struct

def f2u(x): return struct.unpack('<I', struct.pack('<f', x))[0]
SCALE = f2u(128 ** -0.5 * 1.4426950408889634)

def k_att():
    k = Kernel('att_kernel')
    srds(k, [(4, A_WQ, 0, SIZES[A_WQ]), (8, WS, WS_H1, 2048*640*2), (12, WS, WS_KF, 1 << 24),
             (16, WS, WS_VF, 1 << 24), (20, WS, WS_CTX, 1 << 24)])
    guard(k, 256)
    stamp(k, 0)
    Q, O, S = 16, 48, [112, 144]
    KR, VR, T = 176, 192, 208
    sW, sHEAD, sI, sGRP, sWQ, sQB, sNSW, sM0, sT, sTILE, sHB, sLB, sFLAG, sC, sTMP, sTMP2, sCTXA, sCTXB = range(24, 42)
    k('v_lshrrev_b32 v1, 6, v0')
    k('v_and_b32 v0, 63, v0')
    k(f'v_readfirstlane_b32 s{sW}, v1')
    k(f's_and_b32 s{sTMP}, s2, 7')
    k(f's_lshl_b32 s{sTMP}, s{sTMP}, 2')
    k(f's_bfe_u32 s{sHEAD}, s2, 0x20003')
    k(f's_add_u32 s{sHEAD}, s{sHEAD}, s{sTMP}')
    k(f's_lshr_b32 s{sI}, s2, 5')
    k(f's_lshr_b32 s{sGRP}, s{sW}, 2')
    k(f's_and_b32 s{sWQ}, s{sW}, 3')
    k(f's_sub_u32 s{sTMP}, 15, s{sI}')
    k(f's_lshl_b32 s{sTMP2}, s{sI}, 1')
    k(f's_add_u32 s{sNSW}, s{sTMP2}, 2')
    k(f's_sub_u32 s{sTILE}, 15, s{sTMP2}')
    k(f's_cmp_eq_u32 s{sGRP}, 0')
    k(f's_cselect_b32 s{sQB}, s{sI}, s{sTMP}')
    k(f's_cselect_b32 s{sNSW}, s{sNSW}, 100')
    k(f's_cselect_b32 s{sM0}, s{sTMP2}, 15')
    k(f's_cselect_b32 s{sTILE}, 0, s{sTILE}')
    k(f's_lshl_b32 s{sCTXA}, s{sI}, 2')
    k(f's_add_u32 s{sCTXA}, s{sCTXA}, s{sWQ}')
    k(f's_lshl_b32 s{sCTXA}, s{sCTXA}, 18')
    k(f's_lshl_b32 s{sCTXB}, s{sTMP}, 2')
    k(f's_add_u32 s{sCTXB}, s{sCTXB}, s{sWQ}')
    k(f's_lshl_b32 s{sCTXB}, s{sCTXB}, 18')
    k(f's_lshl_b32 s{sTMP}, s{sHEAD}, 13')
    k(f's_add_u32 s{sCTXA}, s{sCTXA}, s{sTMP}')
    k(f's_add_u32 s{sCTXB}, s{sCTXB}, s{sTMP}')
    k(f's_lshl_b32 s{sHB}, s{sHEAD}, 19')
    k(f's_lshl_b32 s{sTMP}, s{sWQ}, 12')
    k(f's_add_u32 s{sHB}, s{sHB}, s{sTMP}')
    k(f's_lshl_b32 s{sLB}, s{sGRP}, 16')
    k(f's_add_u32 s{sLB}, s{sLB}, s{sTMP}')
    k(f's_mov_b32 s{sC}, {SCALE}')
    k(f's_mov_b32 s{sFLAG}, 0')
    vL16, vWQ, vTR0, vTR1, vTR2, vKV, vDQ, vMC, vLS0, vLS1, vAL, vLOLD, vNEG, vH = range(2, 16)
    k(f'v_lshlrev_b32 v{vL16}, 4, v0')
    k('v_lshrrev_b32 v1, 2, v0')
    k('v_and_b32 v1, 3, v1')
    k(f'v_lshrrev_b32 v{T}, 4, v0')
    k(f'v_and_b32 v{T+1}, 3, v0')
    k(f'v_lshrrev_b32 v{vH}, 5, v0')
    k(f's_lshl_b32 s{sTMP}, s{sW}, 3')
    k(f'v_add_u32 v{vWQ}, s{sTMP}, v1')
    k(f'v_lshlrev_b32 v{vWQ}, 13, v{vWQ}')
    k(f'v_lshl_add_u32 v{vWQ}, v{T}, 6, v{vWQ}')
    k(f'v_lshl_add_u32 v{vWQ}, v{T+1}, 4, v{vWQ}')
    k(f's_lshl_b32 s{sTMP}, s{sHEAD}, 8')
    k(f'v_add_u32 v{vWQ}, s{sTMP}, v{vWQ}')
    k(f'v_lshlrev_b32 v{vTR0}, 11, v{vH}')
    k(f'v_lshl_add_u32 v{vTR0}, v1, 6, v{vTR0}')
    k(f'v_and_b32 v{T+2}, 1, v{T}')
    k(f'v_lshl_add_u32 v{vTR0}, v{T+2}, 5, v{vTR0}')
    k(f'v_lshl_add_u32 v{vTR0}, v{T+1}, 3, v{vTR0}')
    k(f'v_add_u32 v{vTR1}, 0x10000, v{vTR0}')
    k(f'v_add_u32 v{vTR2}, 0x20000, v{vTR0}')
    k(f's_lshl_b32 s{sTMP}, s{sGRP}, 16')
    k(f'v_add_u32 v{vKV}, s{sTMP}, v{vL16}')
    k(f'v_and_b32 v{vDQ}, 31, v0')
    k(f's_lshl_b32 s{sTMP}, s{sWQ}, 5')
    k(f'v_add_u32 v{vDQ}, s{sTMP}, v{vDQ}')
    k(f'v_lshlrev_b32 v{T+2}, 2, v{vH}')
    k(f'v_sub_u32 v{vDQ}, v{vDQ}, v{T+2}')
    k(f'v_mov_b32 v{vNEG}, 0xf149f2ca')
    vm = VM()
    sHO = sTMP2
    k(f's_lshl_b32 s{sHO}, s{sQB}, 2')
    k(f's_add_u32 s{sHO}, s{sHO}, s{sWQ}')
    k(f's_mul_i32 s{sHO}, s{sHO}, 40960')
    k(f's_lshl_b32 s{sT}, s{sW}, 11')
    HR = 112
    def wdma(c):
        out = []
        for e in range(2):
            out += [f's_add_u32 m0, s{sT}, {c*16384 + e*1024}', f's_mov_b32 s{sTMP}, {c*524288 + e*32768}',
                    f'buffer_load_dwordx4 v{vWQ}, s[4:7], s{sTMP} offen lds']
            vm.issue(('w', c))
        return out
    def hload(c):
        out = [f's_add_u32 s{sTMP}, s{sHO}, {c*4096}']
        for j in range(4):
            r = HR + 4 * ((c % 5) * 4 + j)
            out.append(f'buffer_load_dwordx4 v[{r}:{r+3}], v{vL16}, s[8:11], s{sTMP} offen offset:{j*1024}')
            vm.issue(('h', c))
        return out
    for c in range(10):
        for s in wdma(c): k(s)
        if c < 5:
            for s in hload(c): k(s)
    AF = [192, 208]
    def areads(c, ks, setn):
        out = []
        base = c * 16384; vb = [vTR0, vTR1, vTR2][base >> 16]; base &= 0xffff
        for nb in range(4):
            for qd in range(2):
                r = AF[setn] + 4 * nb + 2 * qd
                out.append(f'ds_read_b64_tr_b16 v[{r}:{r+1}], v{vb} offset:{base + (4*ks+qd)*1024 + nb*256}')
        return out
    def kdma(slot):
        out = [f's_lshl_b32 s{sTMP}, s{sTILE}, 14', f's_add_u32 s{sTMP}, s{sTMP}, s{sHB}', f's_add_u32 m0, s{sLB}, {slot*16384}']
        for e in range(4):
            out.append(f'buffer_load_dwordx4 v{vL16}, s[12:15], s{sTMP} offen offset:{e*1024} lds')
        return out
    def vdma(slot):
        out = [f's_lshl_b32 s{sTMP}, s{sTILE}, 14', f's_add_u32 s{sTMP}, s{sTMP}, s{sHB}', f's_add_u32 m0, s{sLB}, {32768 + slot*16384}']
        for e in range(4):
            out.append(f'buffer_load_dwordx4 v{vL16}, s[16:19], s{sTMP} offen offset:{e*1024} lds')
        return out
    k(f's_waitcnt vmcnt({vm.cnt(("w", 0))})')
    k('s_barrier')
    for s in areads(0, 0, 0): k(s)
    n = 0
    for c in range(10):
        for ks in range(4):
            cur = n & 1
            fill = []
            pre = []
            if ks == 0: pre.append(f's_waitcnt vmcnt({vm.cnt(("h", c))}) lgkmcnt(0)')
            else: pre.append('s_waitcnt lgkmcnt(0)')
            if ks == 3 and c < 9:
                pre = [f's_waitcnt vmcnt({vm.cnt(("w", c+1))}) lgkmcnt(0)', 's_barrier']
                fill += areads(c + 1, 0, cur ^ 1)
                if c == 5:
                    fill += kdma(0)
                    for e in range(4): vm.issue('k0')
            elif ks < 3:
                fill += areads(c, ks + 1, cur ^ 1)
            for s in pre: k(s)
            hr = HR + 4 * ((c % 5) * 4 + ks)
            mf = []
            for nb in range(4):
                a = O + 16 * nb
                mf.append(f'v_mfma_f32_32x32x16_bf16 v[{a}:{a+15}], v[{AF[cur]+4*nb}:{AF[cur]+4*nb+3}], v[{hr}:{hr+3}], ' + ('0' if n == 0 else f'v[{a}:{a+15}]'))
            interleave(k, mf, fill, per=3)
            if ks == 3 and c + 5 < 10:
                for s in hload(c + 5): k(s)
            n += 1
    for j in range(32):
        k(f'v_cvt_pk_bf16_f32 v{Q+j}, v{O+2*j}, v{O+2*j+1}')
    for j in range(64):
        k(f'v_mov_b32 v{O+j}, 0')
    k('s_barrier')
    LA = k.lab('qx')
    k(f's_cmp_eq_u32 s{sGRP}, 0')
    k(f's_cbranch_scc1 {LA}')
    k(f's_lshl_b32 s{sTMP}, s{sWQ}, 13')
    k(f's_add_u32 s{sTMP}, s{sTMP}, 0x20000')
    k(f'v_add_u32 v{T}, s{sTMP}, v{vL16}')
    for t in range(8):
        k(f'ds_write_b128 v{T}, v[{Q+4*t}:{Q+4*t+3}] offset:{t*1024}')
    k(f'{LA}:')
    k(f's_mov_b32 s{sT}, 0')
    stamp(k, 1)

    rare = []
    def expseq(sb):
        seq = []
        for r in range(18):
            if r < 16: seq.append(f'v_fma_f32 v{sb+r}, v{sb+r}, s{sC}, -v{vMC}')
            if 0 <= r - 1 < 16: seq.append(f'v_exp_f32 v{sb+r-1}, v{sb+r-1}')
            if 0 <= r - 2 < 16:
                q = r - 2
                ls = vLS0 if q % 2 == 0 else vLS1
                seq.append(f'v_add_f32 v{ls}, v{ls}, v{sb+q}')
                if q % 2 == 1: seq.append(f'v_cvt_pk_bf16_f32 v{sb+q//2}, v{sb+q-1}, v{sb+q}')
        return seq
    def maxseq(sb, dst):
        seq = [f'v_max3_f32 v{dst}, v{sb}, v{sb+1}, v{sb+2}', f'v_max3_f32 v{dst+1}, v{sb+3}, v{sb+4}, v{sb+5}']
        for r in range(6, 14, 4):
            seq.append(f'v_max3_f32 v{dst}, v{dst}, v{sb+r}, v{sb+r+1}')
            seq.append(f'v_max3_f32 v{dst+1}, v{dst+1}, v{sb+r+2}, v{sb+r+3}')
        seq.append(f'v_max3_f32 v{dst}, v{dst}, v{sb+14}, v{sb+15}')
        seq.append(f'v_max_f32 v{dst}, v{dst}, v{dst+1}')
        return seq
    def kread(slot, n):
        r = KR + 4 * (n % 4)
        return f'ds_read_b128 v[{r}:{r+3}], v{vKV} offset:{slot*16384 + n*1024}'
    def vread(slot, n):
        r = VR + 4 * (n % 4)
        return f'ds_read_b128 v[{r}:{r+3}], v{vKV} offset:{32768 + slot*16384 + n*1024}'
    def finalize_store(lreg, sbase, blocks):
        k(f'v_mov_b32 v{T}, v{lreg}')
        k(f'v_mov_b32 v{T+1}, v{lreg}')
        k(f'v_permlane32_swap_b32 v{T}, v{T+1}')
        k(f'v_add_f32 v{T}, v{T}, v{T+1}')
        k(f'v_rcp_f32 v{T}, v{T}')
        store_scaled(T, sbase, blocks)
    def store_scaled(rv, sbase, blocks):
        for dt in blocks:
            for j in range(16):
                k(f'v_mul_f32 v{O+16*dt+j}, v{O+16*dt+j}, v{rv}')
            for tt in range(2):
                d = T + 4 + 4 * tt
                for j in range(4):
                    k(f'v_cvt_pk_bf16_f32 v{d+j}, v{O+16*dt+8*tt+2*j}, v{O+16*dt+8*tt+2*j+1}')
                if dt * 2 + tt < 4:
                    k(f'buffer_store_dwordx4 v[{d}:{d+3}], v{vL16}, s[20:23], s{sbase} offen offset:{(dt*2+tt)*1024}')
                else:
                    k(f's_add_u32 s{sTMP}, s{sbase}, 4096')
                    k(f'buffer_store_dwordx4 v[{d}:{d+3}], v{vL16}, s[20:23], s{sTMP} offen offset:{(dt*2+tt-4)*1024}')
    def flag_check():
        LR = k.lab('r1'); LB = k.lab('r1b')
        k(f's_cmp_lg_u32 s{sFLAG}, 0')
        k(f's_cbranch_scc1 {LR}')
        k(f'{LB}:')
        def blk():
            LF = k.lab('r1f')
            k(f'{LR}:')
            k(f's_cmp_eq_u32 s{sFLAG}, 2')
            k(f's_mov_b32 s{sFLAG}, 0')
            k(f's_cbranch_scc1 {LF}')
            for j in range(64): k(f'v_mul_f32 v{O+j}, v{O+j}, v{vAL}')
            k(f's_branch {LB}')
            k(f'{LF}:')
            finalize_store(vLOLD, sCTXA, range(4))
            for j in range(64): k(f'v_mov_b32 v{O+j}, 0')
            k(f's_branch {LB}')
        rare.append(blk)
    def emit_phase(mf, reads, fill, firstwait):
        fill = list(fill)
        nm = len(mf)
        for i, m in enumerate(mf):
            k(firstwait[i])
            k(m)
            if reads[i]: k(reads[i])
            avail = [f for f in fill]
            cnt = -(-len(fill) // (nm - i))
            while cnt > 0 and fill and fill[0][0] <= i:
                g, ins = fill.pop(0)
                if callable(ins): ins()
                else: k(ins)
                cnt -= 1
        for g, ins in fill:
            if callable(ins): ins()
            else: k(ins)

    def step(par, first):
        Sc, Sp = S[par], S[par ^ 1]
        kslot, vslot_prev = par, par ^ 1
        k('s_waitcnt vmcnt(0) lgkmcnt(0)')
        k('s_barrier')
        for n in range(4): k(kread(kslot, n))
        for s in vdma(par): k(s)
        k(f's_add_u32 s{sTILE}, s{sTILE}, 1')
        k(f's_add_u32 s{sTMP}, s{sT}, 1')
        k(f's_cmp_eq_u32 s{sTMP}, s{sNSW}')
        k(f's_cselect_b32 s{sTILE}, 0, s{sTILE}')
        if par == 0 and not first:
            LS = k.lab('nok')
            k(f's_cmp_eq_u32 s{sT}, 16')
            k(f's_cbranch_scc1 {LS}')
            for s in kdma(par ^ 1): k(s)
            k(f'{LS}:')
        else:
            for s in kdma(par ^ 1): k(s)
        if not first: flag_check()
        mf = []; reads = []; waits = []
        for n in range(16):
            kb, tq = n >> 3, n & 7
            a = Sc + 16 * kb; r = KR + 4 * (n % 4)
            mf.append(f'v_mfma_f32_32x32x16_bf16 v[{a}:{a+15}], v[{r}:{r+3}], v[{Q+4*tq}:{Q+4*tq+3}], ' + ('0' if tq == 0 else f'v[{a}:{a+15}]'))
            if n + 4 < 16: reads.append(kread(kslot, n + 4))
            elif not first: reads.append(vread(vslot_prev, n + 4 - 16))
            else: reads.append(None)
            waits.append(f's_waitcnt lgkmcnt({3 if (n <= 12 or not first) else 15 - n})')
        fill = []
        if not first: fill += [(0, s) for s in expseq(Sp + 16)]
        fill += [(11, s) for s in maxseq(Sc, T)]
        emit_phase(mf, reads, fill, waits)
        LM = k.lab('mask'); LMB = k.lab('maskb')
        k(f's_sub_u32 s{sTMP}, s{sT}, s{sM0}')
        k(f's_cmp_lt_u32 s{sTMP}, 2')
        k(f's_cbranch_scc1 {LM}')
        k(f'{LMB}:')
        def mblk():
            k(f'{LM}:')
            k(f's_lshl_b32 s{sTMP}, s{sTMP}, 6')
            k(f'v_subrev_u32 v{T+2}, s{sTMP}, v{vDQ}')
            for r in range(32 + 3):
                if r < 32:
                    cr = 32 * (r >> 4) + 8 * ((r & 15) >> 2) + (r & 3)
                    sp = 44 + 2 * (r % 4)
                    k(f'v_cmp_gt_i32_e64 s[{sp}:{sp+1}], {cr}, v{T+2}')
                if r >= 3:
                    q = r - 3; sp = 44 + 2 * (q % 4)
                    k(f'v_cndmask_b32_e64 v{Sc+q}, v{Sc+q}, v{vNEG}, s[{sp}:{sp+1}]')
            for s in maxseq(Sc, T): k(s)
            k(f's_branch {LMB}')
        rare.append(mblk)
        def maxfin():
            k(f'v_max_f32 v{T}, v{T}, v{T+2}')
            k(f'v_mov_b32 v{T+1}, v{T}')
            k(f'v_permlane32_swap_b32 v{T}, v{T+1}')
            k(f'v_max_f32 v{T}, v{T}, v{T+1}')
            k(f'v_mul_f32 v{T}, s{sC}, v{T}')
            if first:
                k(f'v_mov_b32 v{vMC}, v{T}')
                k(f'v_mov_b32 v{vLS0}, 0')
                k(f'v_mov_b32 v{vLS1}, 0')
                return
            LR = k.lab('r2'); LB = k.lab('r2b')
            k(f'v_sub_f32 v{T+1}, v{T}, v{vMC}')
            k(f'v_cmp_lt_f32 vcc, 0x41000000, v{T+1}')
            k(f's_cmp_eq_u32 s{sT}, s{sNSW}')
            k(f's_cbranch_scc1 {LR}')
            k(f's_cbranch_vccnz {LR}')
            k(f'{LB}:')
            def blk():
                LF = k.lab('r2f')
                k(f'{LR}:')
                k(f's_cbranch_scc1 {LF}')
                k(f'v_max_f32 v{T}, v{T}, v{vMC}')
                k(f'v_sub_f32 v{vAL}, v{vMC}, v{T}')
                k(f'v_exp_f32 v{vAL}, v{vAL}')
                k(f'v_mov_b32 v{vMC}, v{T}')
                k(f'v_mul_f32 v{vLS0}, v{vLS0}, v{vAL}')
                k(f'v_mul_f32 v{vLS1}, v{vLS1}, v{vAL}')
                k(f's_mov_b32 s{sFLAG}, 1')
                k(f's_branch {LB}')
                k(f'{LF}:')
                k(f'v_add_f32 v{vLOLD}, v{vLS0}, v{vLS1}')
                k(f'v_mov_b32 v{vMC}, v{T}')
                k(f'v_mov_b32 v{vLS0}, 0')
                k(f'v_mov_b32 v{vLS1}, 0')
                k(f's_mov_b32 s{sFLAG}, 2')
                k(f's_branch {LB}')
            rare.append(blk)
        fill = [(2, s) for s in maxseq(Sc + 16, T + 2)] + [(2, maxfin)] + [(2, s) for s in expseq(Sc)]
        if first:
            for g, ins in fill:
                if callable(ins): ins()
                else: k(ins)
        else:
            pv_phase(Sp, vslot_prev, fill)
        LQ = k.lab('qs'); LQB = k.lab('qsb')
        k(f's_add_u32 s{sT}, s{sT}, 1')
        k(f's_cmp_eq_u32 s{sT}, s{sNSW}')
        k(f's_cbranch_scc1 {LQ}')
        k(f'{LQB}:')
        def qblk():
            k(f'{LQ}:')
            k(f's_lshl_b32 s{sTMP}, s{sWQ}, 13')
            k(f's_add_u32 s{sTMP}, s{sTMP}, 0x20000')
            k(f'v_add_u32 v{T+4}, s{sTMP}, v{vL16}')
            for t in range(8):
                k(f'ds_read_b128 v[{Q+4*t}:{Q+4*t+3}], v{T+4} offset:{t*1024}')
            k('s_waitcnt lgkmcnt(0)')
            k(f's_branch {LQB}')
        rare.append(qblk)
    def pv_phase(Sp, vslot, fill):
        mf = []; reads = []; waits = []
        for n in range(16):
            ks, dt = n >> 2, n & 3
            a = O + 16 * dt; r = VR + 4 * (n % 4); p = Sp + 16 * (ks >> 1) + 4 * (ks & 1)
            mf.append(f'v_mfma_f32_32x32x16_bf16 v[{a}:{a+15}], v[{r}:{r+3}], v[{p}:{p+3}], v[{a}:{a+15}]')
            reads.append(vread(vslot, n + 4) if n + 4 < 16 else None)
            waits.append(f's_waitcnt lgkmcnt({min(3, 15 - n)})')
        emit_phase(mf, reads, fill, waits)

    step(0, True)
    LOOP = k.lab('loop')
    k(f'{LOOP}:')
    step(1, False)
    step(0, False)
    k(f's_cmp_lt_u32 s{sT}, 17')
    k(f's_cbranch_scc1 {LOOP}')
    stamp(k, 2)
    k('s_waitcnt vmcnt(0) lgkmcnt(0)')
    k('s_barrier')
    for n in range(4): k(vread(0, n))
    flag_check()
    for s in expseq(S[0] + 16): k(s)
    pv_phase(S[0], 0, [])
    k(f'v_add_f32 v{vLS0}, v{vLS0}, v{vLS1}')
    k(f'v_mov_b32 v{vLS1}, v{vLS0}')
    k(f'v_permlane32_swap_b32 v{vLS0}, v{vLS1}')
    k(f'v_add_f32 v{vLS0}, v{vLS0}, v{vLS1}')
    k(f'v_mov_b32 v{T}, v{vMC}')
    k(f'v_mov_b32 v{T+1}, v{vLS0}')
    k(f's_lshl_b32 s{sTMP}, s{sW}, 9')
    k(f's_add_u32 s{sTMP}, s{sTMP}, 0x20000')
    k(f'v_lshlrev_b32 v{T+2}, 3, v0')
    k(f'v_add_u32 v{T+2}, s{sTMP}, v{T+2}')
    k(f'ds_write_b64 v{T+2}, v[{T}:{T+1}]')
    k(f'v_xor_b32 v{T+2}, 0x800, v{T+2}')
    k(f's_lshl_b32 s{sTMP}, s{sWQ}, 13')
    k(f'v_add_u32 v{T+3}, s{sTMP}, v{vKV}')
    k(f'v_xor_b32 v{T+4}, 0x10000, v{T+3}')
    LB2 = k.lab('mB'); LE = k.lab('mE')
    k(f's_cmp_eq_u32 s{sGRP}, 1')
    k(f's_cbranch_scc1 {LB2}')
    def merge(send, keep):
        for j in range(8):
            r = O + 16 * send[0] + 4 * j
            k(f'ds_write_b128 v{T+3}, v[{r}:{r+3}] offset:{j*1024}')
        k('s_waitcnt lgkmcnt(0)')
        k('s_barrier')
        k(f'ds_read_b64 v[{T+6}:{T+7}], v{T+2}')
        for j in range(8):
            r = S[0] + 4 * j
            k(f'ds_read_b128 v[{r}:{r+3}], v{T+4} offset:{j*1024}')
        k('s_waitcnt lgkmcnt(8)')
        k(f'v_max_f32 v{T}, v{vMC}, v{T+6}')
        k(f'v_sub_f32 v{T+1}, v{vMC}, v{T}')
        k(f'v_sub_f32 v{T+2}, v{T+6}, v{T}')
        k(f'v_exp_f32 v{T+1}, v{T+1}')
        k(f'v_exp_f32 v{T+2}, v{T+2}')
        k(f'v_mul_f32 v{T}, v{vLS0}, v{T+1}')
        k(f'v_fmac_f32 v{T}, v{T+7}, v{T+2}')
        k(f'v_rcp_f32 v{T}, v{T}')
        k(f'v_mul_f32 v{T+1}, v{T+1}, v{T}')
        k(f'v_mul_f32 v{T+2}, v{T+2}, v{T}')
        k('s_waitcnt lgkmcnt(0)')
        for j in range(32):
            o = O + 16 * keep[0] + j
            k(f'v_mul_f32 v{o}, v{o}, v{T+1}')
            k(f'v_fmac_f32 v{o}, v{S[0]+j}, v{T+2}')
        k(f'v_mov_b32 v{T}, 1.0')
        for dt in keep:
            for tt in range(2):
                d = T + 4 + 4 * tt
                for j in range(4):
                    k(f'v_cvt_pk_bf16_f32 v{d+j}, v{O+16*dt+8*tt+2*j}, v{O+16*dt+8*tt+2*j+1}')
                k(f's_add_u32 s{sTMP}, s{sCTXB}, {(dt >> 1) * 4096}')
                k(f'buffer_store_dwordx4 v[{d}:{d+3}], v{vL16}, s[20:23], s{sTMP} offen offset:{((dt&1)*2+tt)*1024}')
    merge([2, 3], [0, 1])
    k(f's_branch {LE}')
    k(f'{LB2}:')
    merge([0, 1], [2, 3])
    k(f'{LE}:')
    if OPT.get('stamp'):
        k('s_waitcnt vmcnt(0)')
        stamp(k, 3)
        stamp_out(k, 4, f's{sW}')
    k('s_endpgm')
    i = 0
    while i < len(rare):
        rare[i](); i += 1
    return k, ('att_kernel', 256, 512, 163840)

def kernels():
    ks = [k_att()]
    try:
        import gen4
        ks += gen4.kernels()
    except ImportError:
        pass
    return ks
```

```python
from gen import *
from gen2 import VM, interleave, stamp, stamp_out

def k_oproj():
    k = Kernel('oproj_kernel')
    srds(k, [(4, A_WO, 0, SIZES[A_WO]), (8, WS, WS_CTX, 1 << 24), (12, WS, WS_PART, 4*2048*640*4)])
    guard(k, 256)
    stamp(k, 0)
    sW, sX, sJ, sSP, sQT, sMT, sWQ, sKH, sT, sT2, sWB, sCB, sLB, sOB = range(24, 38)
    k('v_lshrrev_b32 v1, 6, v0')
    k('v_and_b32 v0, 63, v0')
    k(f'v_readfirstlane_b32 s{sW}, v1')
    k(f's_and_b32 s{sX}, s2, 7')
    k(f's_lshr_b32 s{sJ}, s2, 3')
    k(f's_and_b32 s{sSP}, s{sX}, 3')
    k(f's_lshr_b32 s{sQT}, s{sX}, 2')
    k(f's_lshl_b32 s{sQT}, s{sQT}, 3')
    k(f's_lshr_b32 s{sT}, s{sJ}, 2')
    k(f's_add_u32 s{sQT}, s{sQT}, s{sT}')
    k(f's_and_b32 s{sMT}, s{sJ}, 3')
    k(f's_and_b32 s{sWQ}, s{sW}, 3')
    k(f's_lshr_b32 s{sKH}, s{sW}, 2')
    k(f's_lshl_b32 s{sWB}, s{sSP}, 10')
    k(f's_lshl_b32 s{sT}, s{sKH}, 9')
    k(f's_add_u32 s{sWB}, s{sWB}, s{sT}')
    k(f's_lshl_b32 s{sT}, s{sWQ}, 4')
    k(f's_add_u32 s{sWB}, s{sWB}, s{sT}')
    k(f's_mul_i32 s{sWB}, s{sWB}, 1280')
    k(f's_mul_i32 s{sT}, s{sMT}, 320')
    k(f's_add_u32 s{sWB}, s{sWB}, s{sT}')
    k(f's_mul_i32 s{sLB}, s{sW}, 5120')
    k(f's_lshl_b32 s{sCB}, s{sQT}, 2')
    k(f's_add_u32 s{sCB}, s{sCB}, s{sWQ}')
    k(f's_mul_i32 s{sOB}, s{sCB}, 81920')
    k(f's_lshl_b32 s{sCB}, s{sCB}, 18')
    k(f's_lshl_b32 s{sT}, s{sSP}, 16')
    k(f's_add_u32 s{sCB}, s{sCB}, s{sT}')
    k(f's_lshl_b32 s{sT}, s{sKH}, 15')
    k(f's_add_u32 s{sCB}, s{sCB}, s{sT}')
    k(f's_mul_i32 s{sT}, s{sSP}, 5242880')
    k(f's_add_u32 s{sOB}, s{sOB}, s{sT}')
    k(f's_mul_i32 s{sT}, s{sMT}, 2560')
    k(f's_add_u32 s{sOB}, s{sOB}, s{sT}')
    vL16, vTR, vTR1, vTR2, vST = 2, 3, 4, 5, 6
    vP = 7
    T = 12
    k(f'v_lshlrev_b32 v{vL16}, 4, v0')
    k(f's_movk_i32 s{sT}, 1280')
    for p in range(5):
        k(f'v_add_u32 v{T}, {p*64}, v0')
        k(f'v_mul_u32_u24 v{T+1}, 0xccd, v{T}')
        k(f'v_lshrrev_b32 v{T+1}, 18, v{T+1}')
        k(f'v_mul_u32_u24 v{T+2}, 80, v{T+1}')
        k(f'v_sub_u32 v{T}, v{T}, v{T+2}')
        k(f'v_bfe_u32 v{T+2}, v{T}, 2, 2')
        k(f'v_lshl_add_u32 v{T+1}, v{T+1}, 2, v{T+2}')
        k(f'v_mul_lo_u32 v{T+1}, v{T+1}, s{sT}')
        k(f'v_lshrrev_b32 v{T+2}, 4, v{T}')
        k(f'v_lshl_add_u32 v{T+1}, v{T+2}, 6, v{T+1}')
        k(f'v_and_b32 v{T+2}, 3, v{T}')
        k(f'v_lshl_add_u32 v{vP+p}, v{T+2}, 4, v{T+1}')
    k(f'v_lshrrev_b32 v{T}, 5, v0')
    k(f'v_mul_u32_u24 v{vTR}, 1280, v{T}')
    k(f'v_bfe_u32 v{T+1}, v0, 2, 2')
    k(f'v_lshl_add_u32 v{vTR}, v{T+1}, 6, v{vTR}')
    k(f'v_bfe_u32 v{T+1}, v0, 4, 1')
    k(f'v_lshl_add_u32 v{vTR}, v{T+1}, 5, v{vTR}')
    k(f'v_and_b32 v{T+1}, 3, v0')
    k(f'v_lshl_add_u32 v{vTR}, v{T+1}, 3, v{vTR}')
    k(f's_mul_i32 s{sT}, s{sKH}, 20480')
    k(f'v_add_u32 v{vTR}, s{sT}, v{vTR}')
    k(f'v_add_u32 v{vTR1}, 81920, v{vTR}')
    k(f'v_bfe_u32 v{T+1}, v0, 2, 3')
    k(f'v_mul_u32_u24 v{vST}, 10240, v{T+1}')
    k(f'v_and_b32 v{T+1}, 3, v0')
    k(f'v_lshl_add_u32 v{vST}, v{T+1}, 4, v{vST}')
    k(f'v_lshl_add_u32 v{vST}, v{T}, 6, v{vST}')
    ACC = 16; CX = 96; AF = [224, 244]
    AR = 224
    vm = VM()
    def dma(st):
        sl = st & 3; out = []
        out.append(f's_add_u32 s{sT2}, s{sWB}, {st*64*1280}')
        for p in range(5):
            out.append(f's_add_u32 m0, s{sLB}, {sl*40960 + p*1024}')
            out.append(f'buffer_load_dwordx4 v{vP+p}, s[4:7], s{sT2} offen lds')
            vm.issue(('w', st))
        return out
    def cload(st):
        out = [f's_add_u32 s{sT}, s{sCB}, {st*4096}']
        for j in range(4):
            r = CX + 4 * (st * 4 + j)
            out.append(f'buffer_load_dwordx4 v[{r}:{r+3}], v{vL16}, s[8:11], s{sT} offen offset:{j*1024}')
            vm.issue(('c', st))
        return out
    for st in range(8):
        if st < 4:
            for s in dma(st): k(s)
        for s in cload(st): k(s)
    def aread(n):
        kk, nb = divmod(n, 5); st, ks = divmod(kk, 4)
        sl = st & 3; r = AR + 4 * (n % 8)
        vb = vTR if sl < 2 else vTR1
        off = (sl & 1) * 40960 + nb * 256
        return [f'ds_read_b64_tr_b16 v[{r+2*qd}:{r+2*qd+1}], v{vb} offset:{off + (4*ks+2*qd)*1280}' for qd in range(2)]
    NT = 160; PF = 6
    k(f's_waitcnt vmcnt({vm.cnt(("c", 0))})')
    k('s_barrier')
    stamp(k, 1)
    for n in range(PF):
        for s in aread(n): k(s)
    pend = []
    for n in range(NT):
        kk, nb = divmod(n, 5); st, ks = divmod(kk, 4)
        nn = n + PF
        left = min(PF, NT - n) - 1
        k(f's_waitcnt lgkmcnt({2*left})')
        a = ACC + 16 * nb; r = AR + 4 * (n % 8); c = CX + 4 * kk
        k(f'v_mfma_f32_32x32x16_bf16 v[{a}:{a+15}], v[{r}:{r+3}], v[{c}:{c+3}], ' + ('0' if kk == 0 else f'v[{a}:{a+15}]'))
        if nn < NT:
            if nn % 20 == 0:
                s2 = nn // 20
                k(f's_waitcnt vmcnt({min(vm.cnt(("w", s2)), vm.cnt(("c", s2)))})')
                k('s_barrier')
            for s in aread(nn): k(s)
        if nn % 20 == 1 and nn // 20 >= 2 and nn // 20 + 2 < 8:
            pend = dma(nn // 20 + 2)
        for _ in range(3):
            if pend: k(pend.pop(0))
    stamp(k, 2)
    k('s_barrier')
    k(f's_mul_i32 s{sT}, s{sW}, 10240')
    k(f'v_add_u32 v{T}, s{sT}, v{vL16}')
    k(f's_xor_b32 s{sT2}, s{sW}, 4')
    k(f's_mul_i32 s{sT2}, s{sT2}, 10240')
    k(f'v_add_u32 v{T+1}, s{sT2}, v{vL16}')
    L1 = k.lab('k1'); LE = k.lab('e')
    k(f's_cmp_eq_u32 s{sKH}, 1')
    k(f's_cbranch_scc1 {L1}')
    def fin(keep, send):
        for j in range(10):
            r = ACC + 4 * (send + j)
            k(f'ds_write_b128 v{T}, v[{r}:{r+3}] offset:{j*1024}')
        k('s_waitcnt lgkmcnt(0)')
        k('s_barrier')
        for j in range(10):
            k(f'ds_read_b128 v[{CX+4*j}:{CX+4*j+3}], v{T+1} offset:{j*1024}')
        for j in range(10):
            k(f's_waitcnt lgkmcnt({9-j})')
            r = ACC + 4 * (keep + j)
            for e in range(4):
                k(f'v_add_f32 v{r+e}, v{r+e}, v{CX+4*j+e}')
            k(f'buffer_store_dwordx4 v[{r}:{r+3}], v{vST}, s[12:15], s{sOB} offen offset:{(keep+j)*128} ' + OPT.get('stop',''))
    fin(0, 10)
    k(f's_branch {LE}')
    k(f'{L1}:')
    fin(10, 0)
    k(f'{LE}:')
    if OPT.get('stamp'):
        k('s_waitcnt vmcnt(0)')
        stamp(k, 3)
        stamp_out(k, 4, f's{sW}')
    k('s_endpgm')
    return k, ('oproj_kernel', 256, 512, 163840)

def k_ln2():
    k = Kernel('ln2_kernel')
    srds(k, [(4, A_X, 0, SIZES[A_X]), (8, WS, WS_MOD, 3840*4), (12, WS, WS_PART, 4*2048*640*4),
             (16, WS, WS_X1, 2048*640*2), (20, WS, WS_H2, 2048*640*2), (24, OUT, 0, SIZES[OUT]),
             (28, B_WR, 0, 1280), (32, WS, WS_R, 8192)])
    guard(k, 256)
    k('v_and_b32 v1, 15, v0')
    k('v_lshrrev_b32 v2, 4, v0')
    k('s_lshl_b32 s36, s2, 3')
    k('v_add_u32 v2, s36, v2')
    k('v_lshrrev_b32 v3, 2, v2')
    k('v_mul_u32_u24 v3, 10240, v3')
    k('v_and_b32 v4, 3, v2')
    k('v_lshl_add_u32 v3, v4, 4, v3')
    k('v_lshl_add_u32 v3, v1, 6, v3')
    k('v_mul_u32_u24 v4, 1280, v2')
    k('v_lshl_add_u32 v4, v1, 3, v4')
    k('v_lshlrev_b32 v5, 4, v1')
    k('v_lshlrev_b32 v6, 3, v1')
    P = 16
    XR = 176
    GA = 196
    vm = VM()
    for j in range(10):
        k(f's_mov_b32 s37, {(j >> 2) * 4096}')
        for s in range(4):
            r = P + 40 * s + 4 * j
            if s: k(f's_add_u32 s37, s37, 5242880')
            k(f'buffer_load_dwordx4 v[{r}:{r+3}], v3, s[12:15], s37 offen offset:{(j & 3) * 1024}')
            vm.issue(('p', j))
        k(f'buffer_load_dwordx2 v[{XR+2*j}:{XR+2*j+1}], v4, s[4:7], 0 offen offset:{128*j}')
        vm.issue(('p', j))
    k('s_movk_i32 s38, 5120')
    for j in range(10):
        k(f'buffer_load_dwordx4 v[{GA+4*j}:{GA+4*j+3}], v5, s[8:11], s38 offen offset:{256*j}')
        vm.issue(('g', j))
    X = P
    for j in range(10):
        k(f's_waitcnt vmcnt({vm.cnt(("p", j))})')
        for e in range(4):
            r = P + 4 * j + e
            k(f'v_add_f32 v{r}, v{r}, v{r+40}')
            k(f'v_add_f32 v{r+80}, v{r+80}, v{r+120}')
        for e in range(4):
            r = P + 4 * j + e
            k(f'v_add_f32 v{r}, v{r}, v{r+80}')
    CBR, SBR, GBR = 56, 96, 136
    for (base, off) in ((CBR, 4*2560), (SBR, 3*2560), (GBR, 5*2560)):
        k(f's_movk_i32 s38, {off}')
        for j in range(10):
            k(f'buffer_load_dwordx4 v[{base+4*j}:{base+4*j+3}], v5, s[8:11], s38 offen offset:{256*j}')
            vm.issue(('m', base))
    WR = 236
    for j in range(10):
        k(f'buffer_load_dwordx2 v[{WR+2*j}:{WR+2*j+1}], v6, s[28:31], 0 offen offset:{128*j}')
        vm.issue('wr')
    k(f's_waitcnt vmcnt({vm.cnt(("g", 9))})')
    T = 8
    for i in range(0, 40, 2):
        a, b = X + i, X + i + 1
        rne2(k, T, a, b)
        k(f'v_mul_f32 v{a}, v{a}, v{GA+i}')
        k(f'v_mul_f32 v{b}, v{b}, v{GA+i+1}')
        rne2(k, T, a, b)
        xr = XR + i // 2
        k(f'v_lshlrev_b32 v{T}, 16, v{xr}')
        k(f'v_and_b32 v{T+1}, 0xffff0000, v{xr}')
        k(f'v_add_f32 v{a}, v{a}, v{T}')
        k(f'v_add_f32 v{b}, v{b}, v{T+1}')
        k(f'v_cvt_pk_bf16_f32 v{xr}, v{a}, v{b}')
        k(f'v_lshlrev_b32 v{a}, 16, v{xr}')
        k(f'v_and_b32 v{b}, 0xffff0000, v{xr}')
    for j in range(10):
        k(f'buffer_store_dwordx2 v[{XR+2*j}:{XR+2*j+1}], v4, s[16:19], 0 offen offset:{128*j}')
        vm.issue('sx')
    ln_core(k, X, T)
    k(f's_waitcnt vmcnt({vm.cnt("wr")})')
    H2 = GA
    OU = GA + 20
    k(f'v_mov_b32 v{T+2}, 0')
    k(f'v_mov_b32 v{T+3}, 0')
    for i in range(0, 40, 2):
        a, b = X + i, X + i + 1
        ca, cb = CBR + i, CBR + i + 1
        k(f'v_add_f32 v{ca}, 1.0, v{ca}')
        k(f'v_add_f32 v{cb}, 1.0, v{cb}')
        rne2(k, T, ca, cb)
        k(f'v_mul_f32 v{a}, v{a}, v{ca}')
        k(f'v_mul_f32 v{b}, v{b}, v{cb}')
        rne2(k, T, a, b)
        k(f'v_add_f32 v{a}, v{a}, v{SBR+i}')
        k(f'v_add_f32 v{b}, v{b}, v{SBR+i+1}')
        h = H2 + i // 2
        k(f'v_cvt_pk_bf16_f32 v{h}, v{a}, v{b}')
        k(f'v_lshlrev_b32 v{a}, 16, v{h}')
        k(f'v_and_b32 v{b}, 0xffff0000, v{h}')
        w = WR + i // 2
        k(f'v_lshlrev_b32 v{T}, 16, v{w}')
        k(f'v_and_b32 v{T+1}, 0xffff0000, v{w}')
        k(f'v_fmac_f32 v{T+2}, v{a}, v{T}')
        k(f'v_fmac_f32 v{T+3}, v{b}, v{T+1}')
        k(f'v_mul_f32 v{a}, v{a}, v{GBR+i}')
        k(f'v_mul_f32 v{b}, v{b}, v{GBR+i+1}')
        rne2(k, T, a, b)
        xr = XR + i // 2
        k(f'v_lshlrev_b32 v{T}, 16, v{xr}')
        k(f'v_and_b32 v{T+1}, 0xffff0000, v{xr}')
        k(f'v_add_f32 v{a}, v{a}, v{T}')
        k(f'v_add_f32 v{b}, v{b}, v{T+1}')
        k(f'v_cvt_pk_bf16_f32 v{OU+i//2}, v{a}, v{b}')
    for j in range(10):
        k(f'buffer_store_dwordx2 v[{H2+2*j}:{H2+2*j+1}], v4, s[20:23], 0 offen offset:{128*j}')
        k(f'buffer_store_dwordx2 v[{OU+2*j}:{OU+2*j+1}], v4, s[24:27], 0 offen offset:{128*j}')
    k(f'v_add_f32 v{T+2}, v{T+2}, v{T+3}')
    for ror in (1, 2, 4, 8):
        k(f'v_add_f32_dpp v{T+2}, v{T+2}, v{T+2} row_ror:{ror} row_mask:0xf bank_mask:0xf')
    k(f'v_cvt_pk_bf16_f32 v{T+2}, v{T+2}, v{T+2}')
    k(f'v_lshlrev_b32 v{T+2}, 16, v{T+2}')
    k(f'v_ashrrev_i32 v{T}, 31, v{T+2}')
    k(f'v_or_b32 v{T}, 0x80000000, v{T}')
    k(f'v_xor_b32 v{T+2}, v{T+2}, v{T}')
    k(f'v_and_b32 v{T+2}, 0xffff0000, v{T+2}')
    k(f'v_sub_u32 v{T}, 2047, v2')
    k(f'v_or_b32 v{T+2}, v{T+2}, v{T}')
    k(f'v_lshlrev_b32 v{T}, 2, v2')
    k('v_cmp_eq_u32 vcc, 0, v1')
    k('s_and_saveexec_b64 s[40:41], vcc')
    k(f'buffer_store_dword v{T+2}, v{T}, s[32:35], 0 offen')
    k('s_endpgm')
    return k, ('ln2_kernel', 256, 128, 0)

def kernels():
    ks = [k_oproj(), k_ln2()]
    try:
        import gen5
        ks += gen5.kernels()
    except ImportError:
        pass
    return ks
```

```python
from gen import *
from gen2 import VM, interleave, stamp, stamp_out

def wave_max_u32(k, v, t):
    for m in ('row_shr:1', 'row_shr:2', 'row_shr:4', 'row_shr:8'):
        k(f'v_max_u32_dpp v{v}, v{v}, v{v} {m} row_mask:0xf bank_mask:0xf')
    k(f'v_max_u32_dpp v{v}, v{v}, v{v} row_bcast:15 row_mask:0xa bank_mask:0xf')
    k(f'v_max_u32_dpp v{v}, v{v}, v{v} row_bcast:31 row_mask:0xc bank_mask:0xf')

def k_moea():
    k = Kernel('moea_kernel')
    srds(k, [(4, B_WG, 0, SIZES[B_WG]), (8, B_WU, 0, SIZES[B_WU]), (12, WS, WS_R, 8192),
             (16, WS, WS_H2, 2048*640*2), (20, WS, WS_ACT, 8*1728*2), (24, WS, WS_IDX, 32)])
    guard(k, 128)
    sW, sG, sSL, sT, sT2, sLB, sS = range(28, 35)
    k(f's_and_b32 s{sT}, s2, 7')
    k(f's_lshr_b32 s{sT2}, s2, 5')
    k(f's_lshl_b32 s{sG}, s{sT2}, 3')
    k(f's_add_u32 s{sG}, s{sG}, s{sT}')
    L = k.lab('ok')
    k(f's_cmp_lt_u32 s{sG}, 27')
    k(f's_cbranch_scc1 {L}')
    k('s_endpgm')
    k(f'{L}:')
    k(f's_bfe_u32 s{sT}, s2, 0x20003')
    k(f's_lshl_b32 s{sSL}, s{sG}, 2')
    k(f's_add_u32 s{sSL}, s{sSL}, s{sT}')
    k('v_lshrrev_b32 v1, 6, v0')
    k(f'v_readfirstlane_b32 s{sW}, v1')
    k('v_lshlrev_b32 v2, 5, v0')
    k('v_and_b32 v0, 63, v0')
    k('buffer_load_dwordx4 v[8:11], v2, s[12:15], 0 offen')
    k('buffer_load_dwordx4 v[12:15], v2, s[12:15], 0 offen offset:16')
    k('v_lshrrev_b32 v3, 1, v0')
    k('v_mul_u32_u24 v3, 3456, v3')
    k('v_and_b32 v4, 1, v0')
    k('v_lshl_add_u32 v3, v4, 4, v3')
    k(f's_mul_i32 s{sT}, s{sW}, {160*3456}')
    k(f's_lshl_b32 s{sT2}, s{sSL}, 5')
    k(f's_add_u32 s{sT}, s{sT}, s{sT2}')
    k(f's_mul_i32 s{sLB}, s{sW}, 10240')
    for p in range(5):
        k(f's_add_u32 s{sT2}, s{sT}, {p*32*3456}')
        k(f's_add_u32 m0, s{sLB}, {p*1024}')
        k(f'buffer_load_dwordx4 v3, s[4:7], s{sT2} offen lds')
        k(f's_add_u32 m0, s{sLB}, {5120 + p*1024}')
        k(f'buffer_load_dwordx4 v3, s[8:11], s{sT2} offen lds')
    k('s_waitcnt vmcnt(10)')
    k(f's_mov_b32 s{sS}, 0')
    k('v_mov_b32 v6, 0')
    for rnd in range(8):
        for e in range(8):
            k(f'v_subrev_u32 v{16+e}, s{sS}, v{8+e}')
        k('v_max3_u32 v16, v16, v17, v18')
        k('v_max3_u32 v19, v19, v20, v21')
        k('v_max3_u32 v16, v16, v22, v23')
        k('v_max_u32 v16, v16, v19')
        wave_max_u32(k, 16, 17)
        k(f'v_readlane_b32 s{sT}, v16, 63')
        k(f's_add_u32 s{sS}, s{sS}, s{sT}')
        k(f'v_writelane_b32 v6, s{sS}, {rnd}')
    k(f's_lshl_b32 s{sT}, s{sW}, 5')
    k(f's_add_u32 s{sT}, s{sT}, 40960')
    k('v_lshlrev_b32 v5, 2, v0')
    k(f'v_add_u32 v7, s{sT}, v5')
    k('v_cmp_gt_u32 vcc, 8, v0')
    k('s_and_saveexec_b64 s[40:41], vcc')
    k('ds_write_b32 v7, v6')
    k('s_mov_b64 exec, s[40:41]')
    k('s_waitcnt lgkmcnt(0)')
    k('s_barrier')
    k('v_and_b32 v7, 0x7c, v5')
    k('ds_read_b32 v6, v7 offset:40960')
    k('v_mov_b32 v7, 0')
    for j in range(8):
        k(f'ds_read_b128 v[{16+4*j}:{19+4*j}], v7 offset:{40960+16*j}')
    k('s_waitcnt lgkmcnt(0)')
    for j in range(32):
        k(f'v_cmp_gt_u32 vcc, v{16+j}, v6')
        k(f'v_addc_co_u32 v7, vcc, 0, v7, vcc')
    k(f's_lshl_b32 s{sT}, s{sW}, 5')
    k(f's_add_u32 s{sT}, s{sT}, 41088')
    k('v_cmp_gt_u32 vcc, 8, v7')
    k(f'v_lshlrev_b32 v7, 2, v7')
    k(f'v_add_u32 v7, s{sT}, v7')
    k('s_and_saveexec_b64 s[40:41], vcc')
    k('ds_write_b32 v7, v6')
    k('s_mov_b64 exec, s[40:41]')
    k('v_and_b32 v7, 7, v0')
    k('v_lshlrev_b32 v7, 2, v7')
    k(f'v_add_u32 v7, s{sT}, v7')
    k('s_waitcnt lgkmcnt(0)')
    k('ds_read_b32 v6, v7')
    k('s_waitcnt lgkmcnt(0)')
    L2 = k.lab('nk')
    k(f's_or_b32 s{sT}, s2, s{sW}')
    k(f's_cmp_lg_u32 s{sT}, 0')
    k(f's_cbranch_scc1 {L2}')
    k('buffer_store_dword v6, v5, s[24:27], 0 offen')
    k(f'{L2}:')
    k('v_and_b32 v6, 0xffff, v6')
    k('v_sub_u32 v6, 2047, v6')
    k('v_mul_u32_u24 v6, 1280, v6')
    k('v_lshrrev_b32 v7, 4, v0')
    k('v_lshl_add_u32 v6, v7, 4, v6')
    k(f's_mul_i32 s{sT}, s{sW}, 320')
    for ks in range(5):
        k(f'buffer_load_dwordx4 v[{16+4*ks}:{19+4*ks}], v6, s[16:19], s{sT} offen offset:{ks*64}')
    k('v_lshlrev_b32 v8, 8, v7')
    k('v_bfe_u32 v9, v0, 2, 2')
    k('v_lshl_add_u32 v8, v9, 5, v8')
    k('v_and_b32 v9, 3, v0')
    k('v_lshl_add_u32 v8, v9, 3, v8')
    k(f'v_add_u32 v8, s{sLB}, v8')
    k('s_waitcnt vmcnt(5)')
    for m in range(2):
        for ks in range(5):
            for qd in range(2):
                r = 40 + 20 * m + 4 * ks + 2 * qd
                k(f'ds_read_b64_tr_b16 v[{r}:{r+1}], v8 offset:{m*5120 + ks*1024 + qd*128}')
    k('s_waitcnt vmcnt(0) lgkmcnt(0)')
    for ks in range(5):
        for m in range(2):
            a = 80 + 4 * m; r = 40 + 20 * m + 4 * ks
            k(f'v_mfma_f32_16x16x32_bf16 v[{a}:{a+3}], v[{16+4*ks}:{19+4*ks}], v[{r}:{r+3}], ' + ('0' if ks == 0 else f'v[{a}:{a+3}]'))
    k(f's_lshl_b32 s{sT}, s{sW}, 10')
    k('v_lshlrev_b32 v9, 4, v0')
    k(f'v_add_u32 v10, s{sT}, v9')
    k('v_cmp_gt_u32 vcc, 32, v0')
    k('s_and_saveexec_b64 s[40:41], vcc')
    k('ds_write_b128 v10, v[80:83] offset:45056')
    k('ds_write_b128 v10, v[84:87] offset:45568')
    k('s_waitcnt lgkmcnt(0)')
    k('s_barrier')
    LE = k.lab('e')
    k(f's_cmp_lg_u32 s{sW}, 0')
    k(f's_cbranch_scc1 {LE}')
    for w in range(1, 4):
        for m in range(2):
            r = 16 + 8 * w + 4 * m
            k(f'ds_read_b128 v[{r}:{r+3}], v9 offset:{45056 + w*1024 + m*512}')
    k('s_waitcnt lgkmcnt(0)')
    for w in range(1, 4):
        for e in range(8):
            k(f'v_add_f32 v{80+e}, v{80+e}, v{16+8*w+e}')
    k(f's_mov_b32 s{sT}, {LOG2E}')
    rne2(k, 12, 80, 81); rne2(k, 12, 82, 83); rne2(k, 12, 84, 85); rne2(k, 12, 86, 87)
    for e in range(4):
        k(f'v_mul_f32 v{16+e}, s{sT}, v{80+e}')
        k(f'v_exp_f32 v{16+e}, -v{16+e}')
        k(f'v_add_f32 v{16+e}, 1.0, v{16+e}')
        k(f'v_rcp_f32 v{16+e}, v{16+e}')
        k(f'v_mul_f32 v{80+e}, v{80+e}, v{16+e}')
    rne2(k, 12, 80, 81); rne2(k, 12, 82, 83)
    for e in range(4):
        k(f'v_mul_f32 v{80+e}, v{80+e}, v{84+e}')
    k('v_cvt_pk_bf16_f32 v80, v80, v81')
    k('v_cvt_pk_bf16_f32 v82, v82, v83')
    k('v_mul_u32_u24 v9, 13824, v7')
    k('v_and_b32 v10, 15, v0')
    k('v_lshl_add_u32 v9, v10, 1, v9')
    k(f's_lshl_b32 s{sT}, s{sSL}, 5')
    k(f'buffer_store_short v80, v9, s[20:23], s{sT} offen')
    k(f'buffer_store_short_d16_hi v80, v9, s[20:23], s{sT} offen offset:3456')
    k(f's_add_u32 s{sT}, s{sT}, 6912')
    k(f'buffer_store_short v82, v9, s[20:23], s{sT} offen')
    k(f'buffer_store_short_d16_hi v82, v9, s[20:23], s{sT} offen offset:3456')
    k(f'{LE}:')
    k('s_endpgm')
    return k, ('moea_kernel', 128, 256, 49152)

def k_moeb():
    k = Kernel('moeb_kernel')
    srds(k, [(4, B_WD, 0, SIZES[B_WD]), (8, WS, WS_ACT, 8*1728*2), (12, WS, WS_IDX, 32),
             (16, WS, WS_H2, 2048*640*2), (20, WS, WS_X1, 2048*640*2), (24, OUT, 0, SIZES[OUT]), (36, WS, WS_MOD, 3840*4)])
    guard(k, 64)
    sW, sG, sSL, sT, sT2, sLB = range(28, 34)
    k(f's_and_b32 s{sT}, s2, 7')
    k(f's_lshr_b32 s{sT2}, s2, 5')
    k(f's_lshl_b32 s{sG}, s{sT2}, 3')
    k(f's_add_u32 s{sG}, s{sG}, s{sT}')
    L = k.lab('ok')
    k(f's_cmp_lt_u32 s{sG}, 10')
    k(f's_cbranch_scc1 {L}')
    k('s_endpgm')
    k(f'{L}:')
    k(f's_bfe_u32 s{sT}, s2, 0x20003')
    k(f's_lshl_b32 s{sSL}, s{sG}, 2')
    k(f's_add_u32 s{sSL}, s{sSL}, s{sT}')
    k('v_lshrrev_b32 v1, 6, v0')
    k(f'v_readfirstlane_b32 s{sW}, v1')
    k('v_and_b32 v0, 63, v0')
    k('v_lshrrev_b32 v7, 4, v0')
    k('v_lshlrev_b32 v2, 4, v7')
    k('buffer_load_dwordx4 v[100:103], v2, s[12:15], 0 offen')
    k('v_lshrrev_b32 v3, 1, v0')
    k('v_mul_u32_u24 v3, 1280, v3')
    k('v_and_b32 v4, 1, v0')
    k('v_lshl_add_u32 v3, v4, 4, v3')
    k(f's_mul_i32 s{sT}, s{sW}, {288*1280}')
    k(f's_lshl_b32 s{sT2}, s{sSL}, 5')
    k(f's_add_u32 s{sT}, s{sT}, s{sT2}')
    k(f's_mul_i32 s{sLB}, s{sW}, 9216')
    for p in range(9):
        k(f's_add_u32 s{sT2}, s{sT}, {p*32*1280}')
        k(f's_add_u32 m0, s{sLB}, {p*1024}')
        k(f'buffer_load_dwordx4 v3, s[4:7], s{sT2} offen lds')
    k('v_and_b32 v6, 7, v0')
    k('v_mul_u32_u24 v6, 3456, v6')
    k('v_lshl_add_u32 v6, v7, 4, v6')
    k(f's_mul_i32 s{sT}, s{sW}, 576')
    for ks in range(9):
        k(f'buffer_load_dwordx4 v[{16+4*ks}:{19+4*ks}], v6, s[8:11], s{sT} offen offset:{ks*64}')
    k('s_waitcnt vmcnt(18)')
    k('v_and_b32 v10, 15, v0')
    k(f's_lshl_b32 s{sT2}, s{sSL}, 5')
    for e in range(4):
        k(f'v_and_b32 v{104+e}, 0xffff, v{100+e}')
        k(f'v_sub_u32 v{104+e}, 2047, v{104+e}')
        k(f'v_mul_u32_u24 v{104+e}, 1280, v{104+e}')
        k(f'v_lshl_add_u32 v{104+e}, v10, 1, v{104+e}')
        k(f'buffer_load_ushort v{108+e}, v{104+e}, s[16:19], s{sT2} offen')
        k(f'buffer_load_ushort v{112+e}, v{104+e}, s[20:23], s{sT2} offen')
    k('v_lshlrev_b32 v11, 2, v10')
    k(f's_lshl_b32 s{sT}, s{sSL}, 6')
    k(f's_add_u32 s{sT}, s{sT}, {5*2560}')
    k(f'buffer_load_dword v116, v11, s[36:39], s{sT} offen')
    k('v_lshlrev_b32 v8, 8, v7')
    k('v_bfe_u32 v9, v0, 2, 2')
    k('v_lshl_add_u32 v8, v9, 5, v8')
    k('v_and_b32 v9, 3, v0')
    k('v_lshl_add_u32 v8, v9, 3, v8')
    k(f'v_add_u32 v8, s{sLB}, v8')
    k('s_waitcnt vmcnt(18)')
    for ks in range(9):
        for qd in range(2):
            r = 56 + 4 * ks + 2 * qd
            k(f'ds_read_b64_tr_b16 v[{r}:{r+1}], v8 offset:{ks*1024 + qd*128}')
    k('s_waitcnt vmcnt(9) lgkmcnt(0)')
    for ks in range(9):
        a = 92 + 4 * (ks & 1); r = 56 + 4 * ks
        k(f'v_mfma_f32_16x16x32_bf16 v[{a}:{a+3}], v[{16+4*ks}:{19+4*ks}], v[{r}:{r+3}], ' + ('0' if ks < 2 else f'v[{a}:{a+3}]'))
    for e in range(4):
        k(f'v_add_f32 v{92+e}, v{92+e}, v{96+e}')
    k(f's_lshl_b32 s{sT}, s{sW}, 9')
    k('v_lshlrev_b32 v9, 4, v0')
    k(f'v_add_u32 v10, s{sT}, v9')
    k('v_cmp_gt_u32 vcc, 32, v0')
    k('s_and_saveexec_b64 s[40:41], vcc')
    k('ds_write_b128 v10, v[92:95] offset:55296')
    k('s_waitcnt lgkmcnt(0)')
    k('s_barrier')
    LE = k.lab('e')
    k(f's_cmp_lg_u32 s{sW}, 0')
    k(f's_cbranch_scc1 {LE}')
    for w in range(1, 6):
        k(f'ds_read_b128 v[{16+4*w}:{19+4*w}], v9 offset:{55296 + w*512}')
    k('s_waitcnt lgkmcnt(0) vmcnt(0)')
    for w in range(1, 6):
        for e in range(4):
            k(f'v_add_f32 v{92+e}, v{92+e}, v{16+4*w+e}')
    rne2(k, 12, 92, 93); rne2(k, 12, 94, 95)
    k(f's_mov_b32 s{sT}, {LOG2E}')
    for e in range(4):
        r = 100 + e
        k(f'v_and_b32 v{r}, 0xffff0000, v{r}')
        k(f'v_ashrrev_i32 v12, 31, v{r}')
        k(f'v_not_b32 v12, v12')
        k(f'v_or_b32 v12, 0x80000000, v12')
        k(f'v_xor_b32 v{r}, v{r}, v12')
        k(f'v_and_b32 v{r}, 0xffff0000, v{r}')
        k(f'v_mul_f32 v{r}, s{sT}, v{r}')
        k(f'v_exp_f32 v{r}, -v{r}')
        k(f'v_add_f32 v{r}, 1.0, v{r}')
        k(f'v_rcp_f32 v{r}, v{r}')
    rne2(k, 12, 100, 101); rne2(k, 12, 102, 103)
    for e in range(4):
        k(f'v_mul_f32 v{92+e}, v{92+e}, v{100+e}')
    rne2(k, 12, 92, 93); rne2(k, 12, 94, 95)
    for e in range(4):
        k(f'v_lshlrev_b32 v{108+e}, 16, v{108+e}')
        k(f'v_add_f32 v{92+e}, v{92+e}, v{108+e}')
    rne2(k, 12, 92, 93); rne2(k, 12, 94, 95)
    for e in range(4):
        k(f'v_mul_f32 v{92+e}, v{92+e}, v116')
    rne2(k, 12, 92, 93); rne2(k, 12, 94, 95)
    for e in range(4):
        k(f'v_lshlrev_b32 v{112+e}, 16, v{112+e}')
        k(f'v_add_f32 v{92+e}, v{92+e}, v{112+e}')
    k('v_cvt_pk_bf16_f32 v92, v92, v93')
    k('v_cvt_pk_bf16_f32 v94, v94, v95')
    k(f'buffer_store_short v92, v104, s[24:27], s{sT2} offen')
    k(f'buffer_store_short_d16_hi v92, v105, s[24:27], s{sT2} offen')
    k(f'buffer_store_short v94, v106, s[24:27], s{sT2} offen')
    k(f'buffer_store_short_d16_hi v94, v107, s[24:27], s{sT2} offen')
    k(f'{LE}:')
    k('s_endpgm')
    return k, ('moeb_kernel', 64, 384, 59392)

def kernels():
    return [k_moea(), k_moeb()]
```

```python
import sys
sys.path.insert(0, 'work')
from asmlib import *
import os, json
OPT = json.loads(os.environ.get('OPT', '{}'))

WS_MOD = 0x0
WS_R   = 0x10000
WS_ACT = 0x20000
WS_IDX = 0x30000
WS_H1  = 0x100000
WS_X1  = 0x400000
WS_H2  = 0x700000
WS_KF  = 0x1000000
WS_VF  = 0x2000000
WS_CTX = 0x3000000
WS_PART = 0x4000000
WS_SIZE = 268435456

A_X, A_CKV, A_WQ, A_WUK, A_WUV, A_WO, B_X, B_WR, B_WG, B_WU, B_WD, IN_C, W_MOD, OUT, DBG, WS = range(16)
SIZES = {A_X: 2048*640*2, A_CKV: 2048*512*2, A_WQ: 640*4096*2, A_WUK: 512*4096*2, A_WUV: 512*4096*2,
         A_WO: 4096*640*2, B_X: 2048*640*2, B_WR: 1280, B_WG: 640*1728*2, B_WU: 640*1728*2, B_WD: 1728*640*2,
         IN_C: 1280, W_MOD: 640*3840*2, OUT: 2048*640*2, DBG: 256, WS: WS_SIZE}

def srds(k, lst, tmp=90):
    for (sb, slot, off, nb) in lst:
        k(f's_load_dwordx2 s[{sb}:{sb+1}], s[0:1], {slot*8}')
    k('s_waitcnt lgkmcnt(0)')
    for (sb, slot, off, nb) in lst:
        if off:
            k(f's_add_u32 s{sb}, s{sb}, {off}')
            k(f's_addc_u32 s{sb+1}, s{sb+1}, 0')
        k(f's_mov_b32 s{sb+2}, {nb}')
        k(f's_mov_b32 s{sb+3}, 0x00020000')

def guard(k, n):
    L = k.lab('go')
    k(f's_cmp_lt_u32 s2, {n}')
    k(f's_cbranch_scc1 {L}')
    k('s_endpgm')
    k(f'{L}:')

LOG2E = 0x3fb8aa3b

def rne2(k, d, a, b):
    k(f'v_cvt_pk_bf16_f32 v{d}, v{a}, v{b}')
    k(f'v_lshlrev_b32 v{a}, 16, v{d}')
    k(f'v_and_b32 v{b}, 0xffff0000, v{d}')

def k_mod():
    k = Kernel('mod_kernel')
    srds(k, [(4, IN_C, 0, SIZES[IN_C]), (8, W_MOD, 0, SIZES[W_MOD]), (12, WS, WS_MOD, 3840*4)])
    guard(k, 240)
    k('v_lshrrev_b32 v1, 1, v0')
    k('v_and_b32 v2, 1, v0')
    k('v_lshlrev_b32 v3, 1, v1')
    k('s_movk_i32 s16, 7680')
    k('v_mul_lo_u32 v4, v1, s16')
    k('v_lshl_add_u32 v4, v2, 4, v4')
    k('s_lshl_b32 s17, s2, 5')
    for p in range(5):
        k(f'buffer_load_ushort v{10+p}, v3, s[4:7], 0 offen offset:{p*256}')
    for p in range(5):
        k(f's_add_u32 s18, s17, {p*128*7680}')
        k(f'buffer_load_dwordx4 v[{16+4*p}:{19+4*p}], v4, s[8:11], s18 offen')
    k('s_waitcnt vmcnt(5)')
    k(f's_mov_b32 s19, {LOG2E}')
    for p in range(5):
        r = 10 + p
        k(f'v_lshlrev_b32 v{r}, 16, v{r}')
        k(f'v_mul_f32 v5, s19, v{r}')
        k(f'v_exp_f32 v5, -v5')
        k(f'v_add_f32 v5, 1.0, v5')
        k(f'v_rcp_f32 v5, v5')
        k(f'v_mul_f32 v{r}, v{r}, v5')
        k(f'v_cvt_pk_bf16_f32 v{r}, v{r}, v{r}')
        k(f'v_lshlrev_b32 v{r}, 16, v{r}')
    for j in range(8):
        k(f'v_mov_b32 v{40+j}, 0')
    for p in range(5):
        k(f's_waitcnt vmcnt({4-p})')
        for j in range(4):
            w = 16 + 4*p + j
            k(f'v_lshlrev_b32 v5, 16, v{w}')
            k(f'v_and_b32 v6, 0xffff0000, v{w}')
            k(f'v_fmac_f32 v{40+2*j}, v5, v{10+p}')
            k(f'v_fmac_f32 v{41+2*j}, v6, v{10+p}')
    for ror in (2, 4, 8):
        for j in range(8):
            k(f'v_add_f32_dpp v{40+j}, v{40+j}, v{40+j} row_ror:{ror} row_mask:0xf bank_mask:0xf')
    k('v_and_b32 v5, 15, v0')
    k('v_lshrrev_b32 v6, 4, v0')
    k('v_lshlrev_b32 v6, 6, v6')
    k('v_lshl_add_u32 v6, v2, 5, v6')
    k('v_cmp_gt_u32 vcc, 2, v5')
    k('s_and_saveexec_b64 s[20:21], vcc')
    k('ds_write_b128 v6, v[40:43]')
    k('ds_write_b128 v6, v[44:47] offset:16')
    k('s_mov_b64 exec, s[20:21]')
    k('s_waitcnt lgkmcnt(0)')
    k('s_barrier')
    k('v_cmp_gt_u32 vcc, 16, v0')
    k('s_and_saveexec_b64 s[20:21], vcc')
    L = k.lab('end')
    k(f's_cbranch_execz {L}')
    k('v_lshlrev_b32 v5, 2, v0')
    for j in range(16):
        k(f'ds_read_b32 v{10+j}, v5 offset:{j*64}')
    k('s_waitcnt lgkmcnt(0)')
    for j in range(1, 16):
        k(f'v_add_f32 v10, v10, v{10+j}')
    k('v_cvt_pk_bf16_f32 v10, v10, v10')
    k('v_lshlrev_b32 v10, 16, v10')
    k('s_lshl_b32 s17, s2, 6')
    k('buffer_store_dword v10, v5, s[12:15], s17 offen')
    k(f'{L}:')
    k('s_endpgm')
    return k, ('mod_kernel', 240, 256, 1024)

def ln_core(k, x0, t0):
    s, q, m, tt = t0, t0+1, t0+2, t0+3
    k(f'v_add_f32 v{s}, v{x0}, v{x0+1}')
    k(f'v_add_f32 v{q}, v{x0+2}, v{x0+3}')
    for i in range(4, 40, 2):
        k(f'v_add_f32 v{s}, v{s}, v{x0+i}')
        k(f'v_add_f32 v{q}, v{q}, v{x0+i+1}')
    k(f'v_add_f32 v{s}, v{s}, v{q}')
    for ror in (1, 2, 4, 8):
        k(f'v_add_f32_dpp v{s}, v{s}, v{s} row_ror:{ror} row_mask:0xf bank_mask:0xf')
    k(f'v_mul_f32 v{m}, 0x3acccccd, v{s}')
    k(f'v_sub_f32 v{tt}, v{x0}, v{m}')
    k(f'v_mul_f32 v{s}, v{tt}, v{tt}')
    k(f'v_sub_f32 v{tt}, v{x0+1}, v{m}')
    k(f'v_mul_f32 v{q}, v{tt}, v{tt}')
    for i in range(2, 40, 2):
        k(f'v_sub_f32 v{tt}, v{x0+i}, v{m}')
        k(f'v_fmac_f32 v{s}, v{tt}, v{tt}')
        k(f'v_sub_f32 v{tt}, v{x0+i+1}, v{m}')
        k(f'v_fmac_f32 v{q}, v{tt}, v{tt}')
    k(f'v_add_f32 v{s}, v{s}, v{q}')
    for ror in (1, 2, 4, 8):
        k(f'v_add_f32_dpp v{s}, v{s}, v{s} row_ror:{ror} row_mask:0xf bank_mask:0xf')
    k(f'v_mul_f32 v{s}, 0x3acccccd, v{s}')
    rne2(k, tt, s, m)
    k(f'v_add_f32 v{s}, 0x3727c5ac, v{s}')
    k(f'v_cvt_pk_bf16_f32 v{s}, v{s}, v{s}')
    k(f'v_lshlrev_b32 v{s}, 16, v{s}')
    k(f'v_sqrt_f32 v{s}, v{s}')
    k(f'v_cvt_pk_bf16_f32 v{s}, v{s}, v{s}')
    k(f'v_lshlrev_b32 v{s}, 16, v{s}')
    k(f'v_rcp_f32 v{s}, v{s}')
    for i in range(0, 40, 2):
        a, b = x0+i, x0+i+1
        k(f'v_sub_f32 v{a}, v{a}, v{m}')
        k(f'v_sub_f32 v{b}, v{b}, v{m}')
        rne2(k, tt, a, b)
        k(f'v_mul_f32 v{a}, v{a}, v{s}')
        k(f'v_mul_f32 v{b}, v{b}, v{s}')
        rne2(k, tt, a, b)

def k_ln1():
    k = Kernel('ln1_kernel')
    srds(k, [(4, A_X, 0, SIZES[A_X]), (8, WS, WS_MOD, 3840*4), (12, WS, WS_H1, 2048*640*2)])
    guard(k, 128)
    k('v_and_b32 v1, 15, v0')
    k('v_lshrrev_b32 v2, 4, v0')
    k('s_lshl_b32 s16, s2, 4')
    k('v_add_u32 v2, s16, v2')
    k('s_movk_i32 s17, 1280')
    k('v_mul_lo_u32 v3, v2, s17')
    k('v_lshl_add_u32 v3, v1, 4, v3')
    for j in range(5):
        k(f'buffer_load_dwordx4 v[{8+4*j}:{11+4*j}], v3, s[4:7], 0 offen offset:{256*j}')
    k('v_lshlrev_b32 v4, 5, v1')
    for j in range(5):
        k(f'buffer_load_dwordx4 v[{80+8*j}:{83+8*j}], v4, s[8:11], 0 offen offset:{512*j}')
        k(f'buffer_load_dwordx4 v[{84+8*j}:{87+8*j}], v4, s[8:11], 0 offen offset:{512*j+16}')
    k('s_movk_i32 s18, 2560')
    for j in range(5):
        k(f'buffer_load_dwordx4 v[{120+8*j}:{123+8*j}], v4, s[8:11], s18 offen offset:{512*j}')
        k(f'buffer_load_dwordx4 v[{124+8*j}:{127+8*j}], v4, s[8:11], s18 offen offset:{512*j+16}')
    k('s_waitcnt vmcnt(20)')
    X = 32
    for i in range(20):
        k(f'v_lshlrev_b32 v{X+2*i}, 16, v{8+i}')
        k(f'v_and_b32 v{X+2*i+1}, 0xffff0000, v{8+i}')
    ln_core(k, X, 28)
    k('s_waitcnt vmcnt(0)')
    for i in range(0, 40, 2):
        a, b = X+i, X+i+1
        ca, cb = 120+i, 121+i
        k(f'v_add_f32 v{ca}, 1.0, v{ca}')
        k(f'v_add_f32 v{cb}, 1.0, v{cb}')
        rne2(k, 28, ca, cb)
        k(f'v_mul_f32 v{a}, v{a}, v{ca}')
        k(f'v_mul_f32 v{b}, v{b}, v{cb}')
        rne2(k, 28, a, b)
        k(f'v_add_f32 v{a}, v{a}, v{80+i}')
        k(f'v_add_f32 v{b}, v{b}, v{81+i}')
        k(f'v_cvt_pk_bf16_f32 v{8+i//2}, v{a}, v{b}')
    k('v_lshrrev_b32 v5, 5, v2')
    k('s_mov_b32 s19, 40960')
    k('v_mul_lo_u32 v5, v5, s19')
    k('v_and_b32 v6, 31, v2')
    k('v_lshl_add_u32 v5, v6, 4, v5')
    k('v_lshl_add_u32 v5, v1, 9, v5')
    for j in range(5):
        k(f's_mov_b32 s20, {8192*j}')
        k(f'buffer_store_dwordx4 v[{8+4*j}:{11+4*j}], v5, s[12:15], s20 offen')
    k('s_endpgm')
    return k, ('ln1_kernel', 128, 256, 0)

if __name__ == '__main__':
    ks = [k_mod(), k_ln1()]
    try:
        import gen2
        ks += gen2.kernels()
    except ImportError:
        pass
    build([a for a, b in ks], [b for a, b in ks], os.environ.get('OUTS', 'adaLN_cond__compressed_kv_cla__moe_arch_mod__prompt.s'))
```

```python
from gen import *
from gen2 import VM, interleave, stamp, stamp_out
import struct

def f2u(x): return struct.unpack('<I', struct.pack('<f', x))[0]
SCALE = f2u(128 ** -0.5 * 1.4426950408889634)
THR = f2u(2.0 ** 14)

def k_att():
    k = Kernel('att_kernel')
    srds(k, [(4, A_WQ, 0, SIZES[A_WQ]), (8, WS, WS_H1, 2048*640*2), (12, WS, WS_KF, 1 << 24),
             (16, WS, WS_VF, 1 << 24), (20, WS, WS_CTX, 1 << 24)])
    guard(k, 256)
    stamp(k, 0)
    Q, O, S = 16, 48, [112, 144]
    RG, NM, P0, P1, E, T = 176, 192, [208, 216], 224, 232, 240
    (sW, sHEAD, sI, sGRP, sWQ, sQB, sN1, sN1G, sT, sSPEC, sHB, sLB, sMSK, sC, sTMP, sTMP2, sCTXA, sCTXB,
     sQSW, sFI, sK16, sKO, sVO, sHO) = range(24, 48)
    sMK = 48
    sKEX = 56
    k('v_lshrrev_b32 v1, 6, v0')
    k('v_and_b32 v0, 63, v0')
    k(f'v_readfirstlane_b32 s{sW}, v1')
    k(f's_and_b32 s{sTMP}, s2, 7')
    k(f's_lshl_b32 s{sTMP}, s{sTMP}, 2')
    k(f's_bfe_u32 s{sHEAD}, s2, 0x20003')
    k(f's_add_u32 s{sHEAD}, s{sHEAD}, s{sTMP}')
    k(f's_lshr_b32 s{sI}, s2, 5')
    k(f's_lshr_b32 s{sGRP}, s{sW}, 2')
    k(f's_and_b32 s{sWQ}, s{sW}, 3')
    vL16, vWQ, vTR0, vTR1, vTR2, vKV, vDQ, vLS, vTS, vNEG, vH = range(2, 13)
    k(f'v_lshlrev_b32 v{vL16}, 4, v0')
    k('v_lshrrev_b32 v1, 2, v0')
    k('v_and_b32 v1, 3, v1')
    k(f'v_lshrrev_b32 v{T}, 4, v0')
    k(f'v_and_b32 v{T+1}, 3, v0')
    k(f's_lshl_b32 s{sTMP}, s{sW}, 3')
    k(f'v_add_u32 v{vWQ}, s{sTMP}, v1')
    k(f'v_lshlrev_b32 v{vWQ}, 13, v{vWQ}')
    k(f'v_lshl_add_u32 v{vWQ}, v{T}, 6, v{vWQ}')
    k(f'v_lshl_add_u32 v{vWQ}, v{T+1}, 4, v{vWQ}')
    k(f's_lshl_b32 s{sTMP}, s{sHEAD}, 8')
    k(f'v_add_u32 v{vWQ}, s{sTMP}, v{vWQ}')
    k(f's_sub_u32 s{sTMP}, 15, s{sI}')
    k(f's_cmp_eq_u32 s{sGRP}, 0')
    k(f's_cselect_b32 s{sQB}, s{sI}, s{sTMP}')
    k(f's_lshl_b32 s{sHO}, s{sQB}, 2')
    k(f's_add_u32 s{sHO}, s{sHO}, s{sWQ}')
    k(f's_mul_i32 s{sHO}, s{sHO}, 40960')
    k(f's_lshl_b32 s{sT}, s{sW}, 11')
    vm = VM()
    HR = 112; NH = 4
    LA = OPT.get('qla', 3)
    def wbase(c): return 32768 + (c % 8) * 16384
    def wdma(c):
        out = []
        for e in range(2):
            out.append([f's_add_u32 m0, s{sT}, {wbase(c) + e*1024}', f's_mov_b32 s{sTMP}, {c*524288 + e*32768}',
                        f'buffer_load_dwordx4 v{vWQ}, s[4:7], s{sTMP} offen lds', ('w', c)])
        return out
    def hload(c):
        out = []
        for j in range(4):
            r = HR + 4 * ((c % NH) * 4 + j)
            pre = [f's_add_u32 s{sTMP2}, s{sHO}, {c*4096}'] if j == 0 else []
            out.append(pre + [f'buffer_load_dwordx4 v[{r}:{r+3}], v{vL16}, s[8:11], s{sTMP2} offen offset:{j*1024}', ('h', c)])
        return out
    def emit_grp(g):
        for s in g[:-1]: k(s)
        vm.issue(g[-1])
    for g in wdma(0) + hload(0): emit_grp(g)
    k(f's_lshl_b32 s{sTMP2}, s{sI}, 1')
    k(f's_add_u32 s{sN1}, s{sTMP2}, 2')
    k(f's_add_u32 s{sN1G}, s{sN1}, s{sGRP}')
    k(f's_sub_u32 s{sN1G}, s{sN1G}, 1')
    k(f's_lshl_b32 s{sMSK}, 1, s{sTMP2}')
    k(f's_lshl_b32 s{sSPEC}, 2, s{sTMP2}')
    k(f's_cmp_lt_u32 s{sWQ}, 2')
    k(f's_cselect_b32 s{sMSK}, s{sMSK}, 0')
    k(f's_cselect_b32 s{sK16}, 0x10000, 0')
    k(f's_or_b32 s{sMSK}, s{sMSK}, s{sSPEC}')
    k(f's_or_b32 s{sMSK}, s{sMSK}, 0x10000')
    k(f's_lshl_b32 s{sSPEC}, 6, s{sTMP2}')
    k(f's_or_b32 s{sSPEC}, s{sSPEC}, s{sMSK}')
    k(f's_add_u32 s{sQSW}, s{sTMP2}, 1')
    k(f's_cmp_eq_u32 s{sGRP}, 0')
    k(f's_cselect_b32 s{sMSK}, s{sMSK}, s{sK16}')
    k(f's_cselect_b32 s{sSPEC}, s{sSPEC}, s{sK16}')
    k(f's_cselect_b32 s{sQSW}, s{sQSW}, 100')
    k(f's_cselect_b32 s{sFI}, s{sN1}, 100')
    k(f's_cselect_b32 s{sK16}, 64, 0')
    k('s_barrier')
    for c in range(1, LA):
        for g in wdma(c) + hload(c): emit_grp(g)
    k(f's_sub_u32 s{sTMP}, 15, s{sI}')
    k(f's_lshl_b32 s{sCTXA}, s{sI}, 2')
    k(f's_add_u32 s{sCTXA}, s{sCTXA}, s{sWQ}')
    k(f's_lshl_b32 s{sCTXA}, s{sCTXA}, 18')
    k(f's_lshl_b32 s{sCTXB}, s{sTMP}, 2')
    k(f's_add_u32 s{sCTXB}, s{sCTXB}, s{sWQ}')
    k(f's_lshl_b32 s{sCTXB}, s{sCTXB}, 18')
    k(f's_lshl_b32 s{sTMP}, s{sHEAD}, 13')
    k(f's_add_u32 s{sCTXA}, s{sCTXA}, s{sTMP}')
    k(f's_add_u32 s{sCTXB}, s{sCTXB}, s{sTMP}')
    k(f's_lshl_b32 s{sHB}, s{sHEAD}, 19')
    k(f's_lshl_b32 s{sTMP}, s{sWQ}, 12')
    k(f's_add_u32 s{sHB}, s{sHB}, s{sTMP}')
    k(f's_lshl_b32 s{sLB}, s{sGRP}, 16')
    k(f's_add_u32 s{sLB}, s{sLB}, s{sTMP}')
    k(f's_mov_b32 s{sC}, {SCALE}')
    k(f'v_lshrrev_b32 v{vH}, 5, v0')
    k(f'v_lshlrev_b32 v{vTR0}, 11, v{vH}')
    k(f'v_lshl_add_u32 v{vTR0}, v1, 6, v{vTR0}')
    k(f'v_and_b32 v{T+2}, 1, v{T}')
    k(f'v_lshl_add_u32 v{vTR0}, v{T+2}, 5, v{vTR0}')
    k(f'v_lshl_add_u32 v{vTR0}, v{T+1}, 3, v{vTR0}')
    k(f'v_add_u32 v{vTR1}, 0x10000, v{vTR0}')
    k(f'v_add_u32 v{vTR2}, 0x20000, v{vTR0}')
    k(f's_lshl_b32 s{sTMP}, s{sGRP}, 16')
    k(f'v_add_u32 v{vKV}, s{sTMP}, v{vL16}')
    k(f'v_and_b32 v{vDQ}, 31, v0')
    k(f's_lshl_b32 s{sTMP}, s{sWQ}, 5')
    k(f'v_add_u32 v{vDQ}, s{sTMP}, v{vDQ}')
    k(f'v_lshlrev_b32 v{T+2}, 2, v{vH}')
    k(f'v_sub_u32 v{vDQ}, v{vDQ}, v{T+2}')
    k(f'v_mov_b32 v{vNEG}, 0xf149f2ca')
    AF = [176, 192]
    def areads(c, ks, setn):
        out = []
        base = wbase(c); vb = [vTR0, vTR1, vTR2][base >> 16]; base &= 0xffff
        for nb in range(4):
            for qd in range(2):
                r = AF[setn] + 4 * nb + 2 * qd
                out.append(f'ds_read_b64_tr_b16 v[{r}:{r+1}], v{vb} offset:{base + (4*ks+qd)*1024 + nb*256}')
        return out
    def kinit(tile):
        out = []
        for e in range(4):
            pre = [f's_add_u32 s{sKO}, s{sHB}, {tile*16384}', f's_add_u32 m0, s{sLB}, {tile*16384}'] if e == 0 else []
            out.append(pre + [f'buffer_load_dwordx4 v{vL16}, s[12:15], s{sKO} offen offset:{e*1024} lds', ('k', tile)])
        return out
    k(f's_waitcnt vmcnt({vm.cnt(("w", 0))})')
    k('s_barrier')
    if OPT.get('qst'): stamp(k, 4)
    for s in areads(0, 0, 0): k(s)
    n = 0
    for c in range(10):
        grps = []
        if c + LA < 10: grps = wdma(c + LA) + hload(c + LA)
        if c == 10 - LA: grps = kinit(0)
        if c == 11 - LA: grps = kinit(1)
        for ks in range(4):
            cur = n & 1
            fill = []
            if ks == 0: k(f's_waitcnt vmcnt({vm.cnt(("h", c))}) lgkmcnt(0)')
            elif ks < 3 or c == 9: k('s_waitcnt lgkmcnt(0)')
            if ks == 3 and c < 9:
                k(f's_waitcnt vmcnt({vm.cnt(("w", c+1))}) lgkmcnt(0)')
                k('s_barrier')
                fill += areads(c + 1, 0, cur ^ 1)
            elif ks < 3:
                fill += areads(c, ks + 1, cur ^ 1)
            hr = HR + 4 * ((c % NH) * 4 + ks)
            for nb in range(4):
                a = O + 16 * nb
                k(f'v_mfma_f32_32x32x16_bf16 v[{a}:{a+15}], v[{AF[cur]+4*nb}:{AF[cur]+4*nb+3}], v[{hr}:{hr+3}], ' + ('0' if n == 0 else f'v[{a}:{a+15}]'))
                for _ in range(3):
                    if fill: k(fill.pop(0))
                if nb in (2, 3) and ks < 3 and grps: emit_grp(grps.pop(0))
            n += 1
            if OPT.get('qst') and ks == 3 and c in (1, 4, 7): stamp(k, 5 + c // 3)
        assert not grps
    for j in range(64):
        k(f'v_mul_f32 v{O+j}, s{sC}, v{O+j}')
        if j % 2 == 1 and j >= 3: k(f'v_cvt_pk_bf16_f32 v{Q+j//2-1}, v{O+j-3}, v{O+j-2}')
    k(f'v_cvt_pk_bf16_f32 v{Q+31}, v{O+62}, v{O+63}')
    LQX = k.lab('qx')
    k(f's_cmp_eq_u32 s{sGRP}, 0')
    k(f's_cbranch_scc1 {LQX}')
    k(f's_lshl_b32 s{sTMP}, s{sWQ}, 13')
    k(f's_add_u32 s{sTMP}, s{sTMP}, 0x20000')
    k(f'v_add_u32 v{T}, s{sTMP}, v{vL16}')
    for t in range(8):
        k(f'ds_write_b128 v{T}, v[{Q+4*t}:{Q+4*t+3}] offset:{t*1024}')
    k(f'{LQX}:')
    k(f's_waitcnt vmcnt({vm.cnt(("k", 0))})')
    k('s_barrier')
    def kread(slot, n):
        r = RG + 4 * (n % 4)
        return f'ds_read_b128 v[{r}:{r+3}], v{vKV} offset:{slot*16384 + n*1024}'
    def vread(slot, n):
        r = RG + 4 * (n % 4)
        return f'ds_read_b128 v[{r}:{r+3}], v{vKV} offset:{32768 + slot*16384 + n*1024}'
    for n in range(4): k(kread(0, n))
    for j in range(64): k(f'v_mov_b32 v{O+j}, 0')
    k(f'v_mov_b32 v{vLS}, 0')
    k(f's_mov_b32 s{sT}, 0')
    k(f's_mov_b64 s[{sKEX}:{sKEX+1}], -1')
    stamp(k, 1)

    rare = []
    def expseq(sb, pd, start):
        seq = []
        for r in range(17):
            if r < 16: seq.append(f'v_exp_f32 v{E + r % 8}, v{sb+r}')
            q = r - 1
            if q >= 0:
                if start and q == 0: pass
                elif start and q == 1: seq.append(f'v_add_f32 v{vTS}, v{E}, v{E+1}')
                else: seq.append(f'v_add_f32 v{vTS}, v{vTS}, v{E + q % 8}')
                if q % 2 == 1: seq.append(f'v_cvt_pk_bf16_f32 v{pd + q//2}, v{E + (q-1) % 8}, v{E + q % 8}')
        return seq
    def rowmax(sb, dst):
        k(f'v_max3_f32 v{dst}, v{sb}, v{sb+1}, v{sb+2}')
        k(f'v_max3_f32 v{dst+1}, v{sb+3}, v{sb+4}, v{sb+5}')
        for r in range(6, 30, 4):
            k(f'v_max3_f32 v{dst}, v{dst}, v{sb+r}, v{sb+r+1}')
            k(f'v_max3_f32 v{dst+1}, v{dst+1}, v{sb+r+2}, v{sb+r+3}')
        k(f'v_max3_f32 v{dst}, v{dst}, v{sb+30}, v{sb+31}')
        k(f'v_max_f32 v{dst}, v{dst}, v{dst+1}')
        k(f'v_mov_b32 v{dst+1}, v{dst}')
        k(f'v_permlane32_swap_b32 v{dst}, v{dst+1}')
        k(f'v_max_f32 v{dst}, v{dst}, v{dst+1}')
    def first_init(Sc):
        rowmax(Sc, T)
        for r in range(32): k(f'v_sub_f32 v{Sc+r}, v{Sc+r}, v{T}')
        for r in range(16): k(f'v_sub_f32 v{NM+r}, v{NM+r}, v{T}')
    def store_scaled(rv, sbase, blocks):
        for dt in blocks:
            for j in range(16):
                k(f'v_mul_f32 v{O+16*dt+j}, v{O+16*dt+j}, v{rv}')
            for tt in range(2):
                d = T + 4 + 4 * tt
                for j in range(4):
                    k(f'v_cvt_pk_bf16_f32 v{d+j}, v{O+16*dt+8*tt+2*j}, v{O+16*dt+8*tt+2*j+1}')
                if dt * 2 + tt < 4:
                    k(f'buffer_store_dwordx4 v[{d}:{d+3}], v{vL16}, s[20:23], s{sbase} offen offset:{(dt*2+tt)*1024}')
                else:
                    k(f's_add_u32 s{sTMP}, s{sbase}, 4096')
                    k(f'buffer_store_dwordx4 v[{d}:{d+3}], v{vL16}, s[20:23], s{sTMP} offen offset:{(dt*2+tt-4)*1024}')
    def check(Sp, Sn, p0):
        LR = k.lab('r2'); LB = k.lab('r2b')
        k(f'v_cmp_lt_f32 vcc, {THR}, v{vTS}')
        k(f's_cbranch_vccnz {LR}')
        k(f'{LB}:')
        k(f'v_add_f32 v{vLS}, v{vLS}, v{vTS}')
        def blk():
            k(f'{LR}:')
            k('s_nop 15')
            rowmax(Sp, T)
            k(f'v_max_f32 v{T}, 0, v{T}')
            k(f'v_exp_f32 v{T+1}, -v{T}')
            for r in range(32): k(f'v_sub_f32 v{Sp+r}, v{Sp+r}, v{T}')
            for r in range(32): k(f'v_sub_f32 v{Sn+r}, v{Sn+r}, v{T}')
            for r in range(16): k(f'v_sub_f32 v{NM+r}, v{NM+r}, v{T}')
            for r in range(64): k(f'v_mul_f32 v{O+r}, v{O+r}, v{T+1}')
            k(f'v_mul_f32 v{vLS}, v{vLS}, v{T+1}')
            for s in expseq(Sp, p0, True) + expseq(Sp + 16, P1, False): k(s)
            k(f's_branch {LB}')
        rare.append(blk)
    def special(par, first):
        Sc = S[par]
        LS_ = k.lab('sp'); LB = k.lab('spb')
        k(f's_bitcmp1_b32 s{sSPEC}, s{sT}')
        k(f's_cbranch_scc1 {LS_}')
        k(f'{LB}:')
        def blk():
            L1 = k.lab('sp1')
            k(f'{LS_}:')
            k('s_nop 15')
            k(f's_bitcmp1_b32 s{sMSK}, s{sT}')
            k(f's_cbranch_scc0 {L1}')
            if par == 1:
                k(f'v_subrev_u32 v{T+2}, 64, v{vDQ}')
            else:
                k(f's_cmp_eq_u32 s{sT}, 16')
                k(f's_cselect_b32 s{sTMP}, s{sK16}, 0')
                k(f'v_subrev_u32 v{T+2}, s{sTMP}, v{vDQ}')
            for r in range(32 + 3):
                if r < 32:
                    cr = 32 * (r >> 4) + 8 * ((r & 15) >> 2) + (r & 3)
                    sp = sMK + 2 * (r % 4)
                    k(f'v_cmp_gt_i32_e64 s[{sp}:{sp+1}], {cr}, v{T+2}')
                if r >= 3:
                    q = r - 3; sp = sMK + 2 * (q % 4)
                    k(f'v_cndmask_b32_e64 v{Sc+q}, v{Sc+q}, v{vNEG}, s[{sp}:{sp+1}]')
            k(f'{L1}:')
            if first:
                pass
            elif par == 1:
                k(f's_cmp_lg_u32 s{sT}, s{sQSW}')
                k(f's_cbranch_scc1 {LB}')
                k(f's_lshl_b32 s{sTMP}, s{sWQ}, 13')
                k(f's_add_u32 s{sTMP}, s{sTMP}, 0x20000')
                k(f'v_add_u32 v{T+4}, s{sTMP}, v{vL16}')
                for t in range(8):
                    k(f'ds_read_b128 v[{Q+4*t}:{Q+4*t+3}], v{T+4} offset:{t*1024}')
                for r in range(16): k(f'v_mov_b32 v{NM+r}, 0')
                k('s_waitcnt lgkmcnt(0)')
            else:
                k(f's_cmp_lg_u32 s{sT}, s{sFI}')
                k(f's_cbranch_scc1 {LB}')
                first_init(Sc)
            k(f's_branch {LB}')
        rare.append(blk)
    def dma_jobs(par):
        g = []
        g.append([f's_lshl_b32 s{sVO}, s{sT}, 1', f's_sub_u32 s{sVO}, s{sVO}, s{sN1G}', f's_cmp_lt_u32 s{sT}, s{sN1}',
                  f's_cselect_b32 s{sVO}, s{sT}, s{sVO}', f's_lshl_b32 s{sVO}, s{sVO}, 14', f's_add_u32 s{sVO}, s{sVO}, s{sHB}',
                  f's_add_u32 m0, s{sLB}, {32768 + par*16384}',
                  f'buffer_load_dwordx4 v{vL16}, s[16:19], s{sVO} offen lds'])
        for e in range(1, 4):
            g.append([f'buffer_load_dwordx4 v{vL16}, s[16:19], s{sVO} offen offset:{e*1024} lds'])
        g.append([f's_add_u32 s{sTMP2}, s{sT}, 2', f's_lshl_b32 s{sKO}, s{sTMP2}, 1', f's_sub_u32 s{sKO}, s{sKO}, s{sN1G}',
                  f's_cmp_lt_u32 s{sTMP2}, s{sN1}', f's_cselect_b32 s{sKO}, s{sTMP2}, s{sKO}', f's_lshl_b32 s{sKO}, s{sKO}, 14',
                  f's_add_u32 s{sKO}, s{sKO}, s{sHB}', f's_cmp_lt_u32 s{sT}, 15', f's_cselect_b64 s[{sKEX}:{sKEX+1}], -1, 0',
                  f's_add_u32 m0, s{sLB}, {par*16384}'])
        for e in range(4):
            g.append([f's_mov_b64 exec, s[{sKEX}:{sKEX+1}]',
                      f'buffer_load_dwordx4 v{vL16}, s[12:15], s{sKO} offen offset:{e*1024} lds', 's_mov_b64 exec, -1'])
        return g
    def spread(nitems, ngaps):
        return [(nitems * (i + 1)) // ngaps - (nitems * i) // ngaps for i in range(ngaps)]
    BARP = OPT.get('barp', 13)
    def step(par, first):
        Sc, Sp = S[par], S[par ^ 1]
        jobs = dma_jobs(par)
        fill = [] if first else expseq(Sp + 16, P1, False)
        cnt = spread(len(fill), 15) + [0]
        for n in range(16):
            kb, tq = n >> 3, n & 7
            a = Sc + 16 * kb; r = RG + 4 * (n % 4)
            if n <= 12: k('s_waitcnt lgkmcnt(3)')
            elif n <= BARP: k(f's_waitcnt lgkmcnt({15 - n})')
            srcc = f'v[{a}:{a+15}]' if tq else ('0' if first else f'v[{NM}:{NM+15}]')
            k(f'v_mfma_f32_32x32x16_bf16 v[{a}:{a+15}], v[{r}:{r+3}], v[{Q+4*tq}:{Q+4*tq+3}], {srcc}')
            if n + 4 < 16: k(kread(par, n + 4))
            if n == BARP:
                k('s_waitcnt vmcnt(0) lgkmcnt(0)')
                k('s_barrier')
                if not first:
                    for m in range(0, n - 11): k(vread(par ^ 1, m))
            elif n > BARP and not first: k(vread(par ^ 1, n - 12))
            for _ in range(cnt[n]): k(fill.pop(0))
            if n >= BARP and n < 15:
                for s in jobs.pop(0): k(s)
        if not first: check(Sp, Sc, P0[par ^ 1])
        special(par, first)
        if first:
            for r in range(16): k(f'v_mov_b32 v{NM+r}, 0')
            first_init(Sc)
        fill = expseq(Sc, P0[par], True)
        if first:
            for g in jobs:
                for s in g: k(s)
            for s in fill: k(s)
            for n in range(4): k(kread(par ^ 1, n))
        else:
            pv_phase(P0[par ^ 1], par ^ 1, fill, jobs, par ^ 1)
        if par == 0 and not first:
            LF = k.lab('fin'); LB = k.lab('finb')
            k(f's_cmp_eq_u32 s{sT}, s{sFI}')
            k(f's_cbranch_scc1 {LF}')
            k(f'{LB}:')
            def blk():
                k(f'{LF}:')
                k('s_nop 15')
                k(f'v_mov_b32 v{T}, v{vLS}')
                k(f'v_mov_b32 v{T+1}, v{vLS}')
                k(f'v_permlane32_swap_b32 v{T}, v{T+1}')
                k(f'v_add_f32 v{T}, v{T}, v{T+1}')
                k(f'v_rcp_f32 v{T}, v{T}')
                store_scaled(T, sCTXA, range(4))
                for j in range(64): k(f'v_mov_b32 v{O+j}, 0')
                k(f'v_mov_b32 v{vLS}, 0')
                k(f's_branch {LB}')
            rare.append(blk)
        k(f's_add_u32 s{sT}, s{sT}, 1')
    def pv_phase(p0, vslot, fill, jobs, knext):
        cnt = spread(len(fill), 16)
        for n in range(16):
            ks, dt = n >> 2, n & 3
            a = O + 16 * dt; r = RG + 4 * (n % 4); p = (p0 if ks < 2 else P1) + 4 * (ks & 1)
            k(f's_waitcnt lgkmcnt({3 if knext is not None else min(3, 15 - n)})')
            k(f'v_mfma_f32_32x32x16_bf16 v[{a}:{a+15}], v[{r}:{r+3}], v[{p}:{p+3}], v[{a}:{a+15}]')
            if n + 4 < 16: k(vread(vslot, n + 4))
            elif knext is not None: k(kread(knext, n - 12))
            for _ in range(cnt[n]): k(fill.pop(0))
            if jobs:
                for s in jobs.pop(0): k(s)
        assert not jobs

    step(0, True)
    LOOP = k.lab('loop')
    k(f'{LOOP}:')
    step(1, False)
    step(0, False)
    k(f's_cmp_lt_u32 s{sT}, 17')
    k(f's_cbranch_scc1 {LOOP}')
    stamp(k, 2)
    k('s_waitcnt vmcnt(0) lgkmcnt(0)')
    k('s_barrier')
    for n in range(4): k(vread(0, n))
    for s in expseq(S[0] + 16, P1, False): k(s)
    check(S[0], S[1], P0[0])
    pv_phase(P0[0], 0, [], [], None)
    k(f'v_mov_b32 v{vTS}, v{vLS}')
    k(f'v_permlane32_swap_b32 v{vLS}, v{vTS}')
    k(f'v_add_f32 v{vLS}, v{vLS}, v{vTS}')
    vMC = vTS
    k(f'v_sub_f32 v{vMC}, 0, v{NM}')
    k(f'v_mov_b32 v{T}, v{vMC}')
    k(f'v_mov_b32 v{T+1}, v{vLS}')
    k(f's_lshl_b32 s{sTMP}, s{sW}, 9')
    k(f's_add_u32 s{sTMP}, s{sTMP}, 0x20000')
    k(f'v_lshlrev_b32 v{T+2}, 3, v0')
    k(f'v_add_u32 v{T+2}, s{sTMP}, v{T+2}')
    k(f'ds_write_b64 v{T+2}, v[{T}:{T+1}]')
    k(f'v_xor_b32 v{T+2}, 0x800, v{T+2}')
    k(f's_lshl_b32 s{sTMP}, s{sWQ}, 13')
    k(f'v_add_u32 v{T+3}, s{sTMP}, v{vKV}')
    k(f'v_xor_b32 v{T+4}, 0x10000, v{T+3}')
    LB2 = k.lab('mB'); LE = k.lab('mE')
    k(f's_cmp_eq_u32 s{sGRP}, 1')
    k(f's_cbranch_scc1 {LB2}')
    def merge(send, keep):
        for j in range(8):
            r = O + 16 * send[0] + 4 * j
            k(f'ds_write_b128 v{T+3}, v[{r}:{r+3}] offset:{j*1024}')
        k('s_waitcnt lgkmcnt(0)')
        k('s_barrier')
        k(f'ds_read_b64 v[{T+6}:{T+7}], v{T+2}')
        for j in range(8):
            r = S[0] + 4 * j
            k(f'ds_read_b128 v[{r}:{r+3}], v{T+4} offset:{j*1024}')
        k('s_waitcnt lgkmcnt(8)')
        k(f'v_max_f32 v{T}, v{vMC}, v{T+6}')
        k(f'v_sub_f32 v{T+1}, v{vMC}, v{T}')
        k(f'v_sub_f32 v{T+2}, v{T+6}, v{T}')
        k(f'v_exp_f32 v{T+1}, v{T+1}')
        k(f'v_exp_f32 v{T+2}, v{T+2}')
        k(f'v_mul_f32 v{T}, v{vLS}, v{T+1}')
        k(f'v_fmac_f32 v{T}, v{T+7}, v{T+2}')
        k(f'v_rcp_f32 v{T}, v{T}')
        k(f'v_mul_f32 v{T+1}, v{T+1}, v{T}')
        k(f'v_mul_f32 v{T+2}, v{T+2}, v{T}')
        k('s_waitcnt lgkmcnt(0)')
        for j in range(32):
            o = O + 16 * keep[0] + j
            k(f'v_mul_f32 v{o}, v{o}, v{T+1}')
            k(f'v_fmac_f32 v{o}, v{S[0]+j}, v{T+2}')
        for dt in keep:
            for tt in range(2):
                d = T + 4 + 4 * tt
                for j in range(4):
                    k(f'v_cvt_pk_bf16_f32 v{d+j}, v{O+16*dt+8*tt+2*j}, v{O+16*dt+8*tt+2*j+1}')
                k(f's_add_u32 s{sTMP}, s{sCTXB}, {(dt >> 1) * 4096}')
                k(f'buffer_store_dwordx4 v[{d}:{d+3}], v{vL16}, s[20:23], s{sTMP} offen offset:{((dt&1)*2+tt)*1024}')
    merge([2, 3], [0, 1])
    k(f's_branch {LE}')
    k(f'{LB2}:')
    merge([0, 1], [2, 3])
    k(f'{LE}:')
    if OPT.get('stamp'):
        k('s_waitcnt vmcnt(0)')
        stamp(k, 3)
        stamp_out(k, 8 if OPT.get('qst') else 4, f's{sW}')
    k('s_endpgm')
    i = 0
    while i < len(rare):
        rare[i](); i += 1
    return k, ('att_kernel', 256, 512, 163840)

def kernels():
    ks = [k_att()]
    try:
        import gen4
        ks += gen4.kernels()
    except ImportError:
        pass
    return ks
```

```python
from gen import *

class VM:
    def __init__(self): self.n = 0; self.tags = {}
    def issue(self, tag=None):
        self.n += 1
        if tag is not None: self.tags[tag] = self.n
    def cnt(self, tag):
        return self.n - self.tags[tag]

def stamp(k, i):
    if not OPT.get('stamp'): return
    k(f's_memtime s[{60+4*i}:{61+4*i}]')
    k(f's_memrealtime s[{62+4*i}:{63+4*i}]')
    k('s_waitcnt lgkmcnt(0)')

def stamp_out(k, n, wavereg):
    if not OPT.get('stamp'): return
    L = k.lab('ns')
    k('s_load_dwordx2 s[92:93], s[0:1], 112')
    k('s_waitcnt lgkmcnt(0)')
    k('s_mov_b32 s94, 256')
    k('s_mov_b32 s95, 0x00020000')
    k(f's_cmp_lg_u32 s2, {OPT.get("stampwg", 0)}')
    k(f's_cbranch_scc1 {L}')
    k(f's_cmp_lg_u32 {wavereg}, {OPT.get("stampwave", 0)}')
    k(f's_cbranch_scc1 {L}')
    k('v_mov_b32 v1, 0')
    for i in range(n):
        k(f'v_mov_b32 v2, s{60+4*i}')
        k(f'v_mov_b32 v3, s{62+4*i}')
        k(f'buffer_store_dwordx2 v[2:3], v1, s[92:95], 0 offen offset:{8*i}')
        k('s_nop 2')
    k(f'{L}:')

LST = {}
def lstamp(k, name, vreg, sreg=60):
    if not OPT.get('lst'): return
    l = LST.setdefault(k.name, [])
    if name in l: idx = l.index(name)
    else: idx = len(l); l.append(name)
    assert idx < 64
    k(f's_memtime s[{sreg}:{sreg+1}]')
    k('s_waitcnt lgkmcnt(0)')
    k(f'v_writelane_b32 v{vreg}, s{sreg}, {idx}')

def lstamp_out(k, vreg, wavereg, vtmp):
    if not OPT.get('lst'): return
    L = k.lab('ns')
    k('s_load_dwordx2 s[92:93], s[0:1], 112')
    k('s_waitcnt lgkmcnt(0)')
    k('s_mov_b32 s94, 256')
    k('s_mov_b32 s95, 0x00020000')
    k(f's_cmp_lg_u32 s2, {OPT.get("stampwg", 0)}')
    k(f's_cbranch_scc1 {L}')
    k(f's_cmp_lg_u32 {wavereg}, {OPT.get("stampwave", 0)}')
    k(f's_cbranch_scc1 {L}')
    k(f'v_lshlrev_b32 v{vtmp}, 2, v0')
    k(f'buffer_store_dword v{vreg}, v{vtmp}, s[92:95], 0 offen')
    k(f'{L}:')
    print('LST', k.name, LST[k.name])

def interleave(k, mf, fill, per=None, start=0):
    fill = list(fill)
    n = len(mf)
    for i, m in enumerate(mf):
        k(m)
        if i < start: continue
        if per is not None:
            c = per
        else:
            c = -(-len(fill) // (n - i))
        for _ in range(c):
            if fill: k(fill.pop(0))
    for f in fill: k(f)

def k_kv():
    k = Kernel('kv_kernel')
    srds(k, [(4, A_CKV, 0, SIZES[A_CKV]), (8, A_WUK, 0, SIZES[A_WUK]), (12, A_WUV, 0, SIZES[A_WUV]),
             (16, WS, WS_KF, 1 << 24), (20, WS, WS_VF, 1 << 24)])
    guard(k, 256)
    stamp(k, 0)
    k('v_lshrrev_b32 v1, 6, v0')
    k('v_and_b32 v0, 63, v0')
    k('v_readfirstlane_b32 s24, v1')
    k('s_and_b32 s25, s2, 7')
    k('s_lshr_b32 s26, s2, 3')
    k('s_and_b32 s27, s26, 3')
    k('s_lshr_b32 s28, s26, 2')
    k('s_and_b32 s29, s27, 1')
    k('s_lshl_b32 s29, s29, 1')
    k('s_lshl_b32 s30, s25, 2')
    k('s_add_u32 s29, s29, s30')
    k('s_and_b32 s31, s24, 1')
    k('s_lshr_b32 s32, s24, 1')
    k('v_lshrrev_b32 v1, 2, v0')
    k('v_lshrrev_b32 v2, 4, v0')
    k('v_and_b32 v3, 3, v0')
    k('v_xor_b32 v4, v3, v2')
    k('s_lshl_b32 s33, s28, 8')
    k('s_lshl_b32 s34, s24, 5')
    k('s_add_u32 s33, s33, s34')
    k('v_add_u32 v5, s33, v1')
    k('v_lshlrev_b32 v5, 10, v5')
    k('v_lshl_add_u32 v10, v4, 4, v5')
    k('v_and_b32 v5, 3, v1')
    k('s_lshl_b32 s34, s24, 2')
    k('v_add_u32 v6, s34, v5')
    k('v_lshlrev_b32 v6, 13, v6')
    k('v_lshl_add_u32 v6, v2, 6, v6')
    k('v_lshl_add_u32 v6, v3, 4, v6')
    k('s_lshl_b32 s34, s29, 8')
    k('v_add_u32 v11, s34, v6')
    k('s_lshl_b32 s35, s24, 11')
    k('v_and_b32 v6, 31, v0')
    k('v_lshrrev_b32 v7, 5, v0')
    k('v_and_b32 v8, 3, v1')
    k('v_xor_b32 v8, v8, v7')
    k('s_lshl_b32 s34, s31, 7')
    k('v_add_u32 v9, s34, v6')
    k('v_lshlrev_b32 v9, 6, v9')
    k('v_lshl_add_u32 v12, v8, 4, v9')
    k('v_xor_b32 v13, 32, v12')
    k('v_add_u32 v14, 0x10000, v12')
    k('v_add_u32 v15, 0x10000, v13')
    k('v_lshlrev_b32 v9, 12, v7')
    k('v_lshl_add_u32 v9, v5, 6, v9')
    k('v_and_b32 v8, 1, v2')
    k('v_lshl_add_u32 v9, v8, 5, v9')
    k('v_lshl_add_u32 v9, v3, 3, v9')
    k('s_lshl_b32 s34, s32, 9')
    k('s_add_u32 s34, s34, 16384')
    k('v_add_u32 v16, s34, v9')
    k('v_add_u32 v17, 0x10000, v16')
    k('v_lshlrev_b32 v18, 4, v0')
    LV = k.lab('V')
    k('s_cmp_ge_u32 s27, 2')
    k(f's_cbranch_scc1 {LV}')
    ACC = 128
    SETS = [(64, 80), (88, 104)]
    def variant(isV):
        wsrd = 's[12:15]' if isV else 's[8:11]'
        vm = VM()
        def dma(st):
            sl = st & 3
            out = []
            for e in range(2):
                out.append([f's_add_u32 m0, s35, {sl*32768 + e*1024}', f's_mov_b32 s36, {st*64 + e*16384}',
                            f'buffer_load_dwordx4 v10, s[4:7], s36 offen lds'])
            for e in range(2):
                out.append([f's_add_u32 m0, s35, {sl*32768 + 16384 + e*1024}', f's_mov_b32 s36, {st*262144 + e*256}',
                            f'buffer_load_dwordx4 v11, {wsrd}, s36 offen lds'])
            return out
        def reads(st, ks, setn):
            sl = st & 3; c0, w0 = SETS[setn]
            hi = sl >> 1; so = (sl & 1) * 32768
            out = []
            va = (12 + ks) + 2 * hi
            vw = 16 + hi
            def wr(nb):
                for qd in range(2):
                    out.append(f'ds_read_b64_tr_b16 v[{w0+4*nb+2*qd}:{w0+4*nb+2*qd+1}], v{vw} offset:{so + (4*ks+qd)*2048 + nb*256}')
            def cr(kb):
                out.append(f'ds_read_b128 v[{c0+4*kb}:{c0+4*kb+3}], v{va} offset:{so + kb*2048}')
            wr(0); cr(0); cr(1); cr(2); cr(3); wr(1)
            return out
        def mfmas(setn, first):
            c0, w0 = SETS[setn]; out = []
            for nb in range(2):
                for kb in range(4):
                    a = ACC + 16 * (nb * 4 + kb)
                    W = f'v[{w0+4*nb}:{w0+4*nb+3}]'; C = f'v[{c0+4*kb}:{c0+4*kb+3}]'
                    A, B = (C, W) if isV else (W, C)
                    if OPT.get('kv16'):
                        o = 8 * setn
                        out.append(f'v_mfma_f32_16x16x32_bf16 v[{a+o}:{a+o+3}], {A}, {B}, ' + ('0' if first else f'v[{a+o}:{a+o+3}]') + '\n' +
                                   f'v_mfma_f32_16x16x32_bf16 v[{a+o+4}:{a+o+7}], {B}, {A}, ' + ('0' if first else f'v[{a+o+4}:{a+o+7}]'))
                    else:
                        out.append(f'v_mfma_f32_32x32x16_bf16 v[{a}:{a+15}], {A}, {B}, ' + ('0' if first else f'v[{a}:{a+15}]'))
            return out
        NS = OPT.get('kv_ns', 16)
        for st in range(4):
            for grp in dma(st):
                for s in grp: k(s)
                vm.issue(('d', st))
        k(f's_waitcnt vmcnt({vm.cnt(("d", 0))})')
        k('s_barrier')
        stamp(k, 1)
        for s in reads(0, 0, 0): k(s)
        for st in range(NS):
            k('s_waitcnt lgkmcnt(0)')
            interleave(k, mfmas(0, st == 0), reads(st, 1, 1), per=2)
            if st + 1 < NS:
                k(f's_waitcnt vmcnt({vm.cnt(("d", st+1))}) lgkmcnt(0)')
                k('s_barrier')
                fill = reads(st + 1, 0, 0)
                if st + 4 < NS:
                    for gi, grp in enumerate(dma(st + 4)):
                        if OPT.get('kv_skip', 0) >> (gi // 2) & 1:
                            vm.tags[('d', st + 4)] = vm.n; continue
                        fill += grp; vm.issue(('d', st + 4))
                interleave(k, mfmas(1, False), fill, per=3)
            else:
                k('s_waitcnt lgkmcnt(0)')
                interleave(k, mfmas(1, False), [])
        stamp(k, 2)
        k('s_lshr_b32 s34, s32, 1')
        k('s_add_u32 s34, s34, s29')
        k('s_lshl_b32 s34, s34, 19')
        k('s_lshl_b32 s36, s28, 3')
        k('s_lshl_b32 s37, s31, 2')
        k('s_add_u32 s36, s36, s37')
        k('s_lshl_b32 s36, s36, 13')
        k('s_add_u32 s34, s34, s36')
        k('s_and_b32 s36, s32, 1')
        k(f's_lshl_b32 s36, s36, {11 if isV else 12}')
        k('s_add_u32 s34, s34, s36')
        osrd = 's[20:23]' if isV else 's[16:19]'
        tr = 0
        for nb in range(2):
            for kb in range(4):
                a = ACC + 16 * (nb * 4 + kb)
                for tt in range(2):
                    d = 64 + 4 * (tr % 8); tr += 1
                    for j in range(4):
                        k(f'v_cvt_pk_bf16_f32 v{d+j}, v{a+8*tt+2*j}, v{a+8*tt+2*j+1}')
                    if isV: so, im = kb * 8192 + tt * 4096, nb * 1024
                    else: so, im = kb * 8192, nb * 2048 + tt * 1024
                    k(f's_add_u32 s36, s34, {so}')
                    if not OPT.get('kv_nostore') or tr < 2: k(f'buffer_store_dwordx4 v[{d}:{d+3}], v18, {osrd}, s36 offen offset:{im} ' + OPT.get('stkv',''))
        k('s_waitcnt vmcnt(0)')
        stamp(k, 3)
        stamp_out(k, 4, 's24')
        k('s_endpgm')
    variant(False)
    k(f'{LV}:')
    variant(True)
    return k, ('kv_kernel', 256, 512, 131072)

def kernels():
    ks = [k_kv()]
    try:
        import gen3
        ks += gen3.kernels()
    except ImportError:
        pass
    return ks
```

```python
from gen import *
from gen2 import VM, interleave, stamp, stamp_out
import struct

def f2u(x): return struct.unpack('<I', struct.pack('<f', x))[0]
SCALE = f2u(128 ** -0.5 * 1.4426950408889634)
THR = f2u(2.0 ** 14)

def k_att():
    k = Kernel('att_kernel')
    srds(k, [(4, A_WQ, 0, SIZES[A_WQ]), (8, WS, WS_H1, 2048*640*2), (12, WS, WS_KF, 1 << 24),
             (16, WS, WS_VF, 1 << 24), (20, WS, WS_CTX, 1 << 24)])
    guard(k, 256)
    stamp(k, 0)
    Q, O, S = 16, 48, [112, 144]
    RG, NM, P0, P1, E, T = 176, 192, [208, 216], 224, 232, 240
    (sW, sHEAD, sI, sGRP, sWQ, sQB, sN1, sN1G, sT, sSPEC, sHB, sLB, sMSK, sC, sTMP, sTMP2, sCTXA, sCTXB,
     sQSW, sFI, sK16, sKO, sVO, sHO) = range(24, 48)
    sMK = 48
    sKEX = 56
    k('v_lshrrev_b32 v1, 6, v0')
    k('v_and_b32 v0, 63, v0')
    k(f'v_readfirstlane_b32 s{sW}, v1')
    if OPT.get('oldmap'):
        k(f's_and_b32 s{sTMP}, s2, 7')
        k(f's_lshl_b32 s{sTMP}, s{sTMP}, 2')
        k(f's_bfe_u32 s{sHEAD}, s2, 0x20003')
        k(f's_add_u32 s{sHEAD}, s{sHEAD}, s{sTMP}')
    else:
        k(f's_bfe_u32 s{sTMP}, s2, 0x20003')
        k(f's_lshl_b32 s{sHEAD}, s{sTMP}, 2')
        k(f's_lshr_b32 s{sHEAD}, {OPT.get("htab", 0x7520)}, s{sHEAD}')
        k(f's_xor_b32 s{sHEAD}, s{sHEAD}, s2')
        k(f's_and_b32 s{sHEAD}, s{sHEAD}, 7')
        k(f's_lshl_b32 s{sTMP}, s{sTMP}, 3')
        k(f's_add_u32 s{sHEAD}, s{sHEAD}, s{sTMP}')
    k(f's_lshr_b32 s{sI}, s2, 5')
    k(f's_lshr_b32 s{sGRP}, s{sW}, 2')
    k(f's_and_b32 s{sWQ}, s{sW}, 3')
    vL16, vWQ, vTR0, vTR1, vTR2, vKV, vDQ, vLS, vTS, vNEG, vH = range(2, 13)
    k(f'v_lshlrev_b32 v{vL16}, 4, v0')
    k('v_lshrrev_b32 v1, 2, v0')
    k('v_and_b32 v1, 3, v1')
    k(f'v_lshrrev_b32 v{T}, 4, v0')
    k(f'v_and_b32 v{T+1}, 3, v0')
    k(f's_lshl_b32 s{sTMP}, s{sW}, 3')
    k(f'v_add_u32 v{vWQ}, s{sTMP}, v1')
    k(f'v_lshlrev_b32 v{vWQ}, 13, v{vWQ}')
    k(f'v_lshl_add_u32 v{vWQ}, v{T}, 6, v{vWQ}')
    k(f'v_lshl_add_u32 v{vWQ}, v{T+1}, 4, v{vWQ}')
    k(f's_lshl_b32 s{sTMP}, s{sHEAD}, 8')
    k(f'v_add_u32 v{vWQ}, s{sTMP}, v{vWQ}')
    k(f's_sub_u32 s{sTMP}, 15, s{sI}')
    k(f's_cmp_eq_u32 s{sGRP}, 0')
    k(f's_cselect_b32 s{sQB}, s{sI}, s{sTMP}')
    k(f's_lshl_b32 s{sHO}, s{sQB}, 2')
    k(f's_add_u32 s{sHO}, s{sHO}, s{sWQ}')
    k(f's_mul_i32 s{sHO}, s{sHO}, 40960')
    k(f's_lshl_b32 s{sT}, s{sW}, 11')
    vm = VM()
    HR = 112; NH = 4
    LA = OPT.get('qla', 3)
    def wbase(c): return 32768 + (c % 8) * 16384
    def wdma(c):
        out = []
        for e in range(2):
            out.append([f's_add_u32 m0, s{sT}, {wbase(c) + e*1024}', f's_mov_b32 s{sTMP}, {c*524288 + e*32768}',
                        f'buffer_load_dwordx4 v{vWQ}, s[4:7], s{sTMP} offen lds', ('w', c)])
        return out
    def hload(c):
        out = []
        for j in range(4):
            r = HR + 4 * ((c % NH) * 4 + j)
            pre = [f's_add_u32 s{sTMP2}, s{sHO}, {c*4096}'] if j == 0 else []
            out.append(pre + [f'buffer_load_dwordx4 v[{r}:{r+3}], v{vL16}, s[8:11], s{sTMP2} offen offset:{j*1024}', ('h', c)])
        return out
    def emit_grp(g):
        for s in g[:-1]: k(s)
        vm.issue(g[-1])
    for g in wdma(0) + hload(0): emit_grp(g)
    k(f's_lshl_b32 s{sTMP2}, s{sI}, 1')
    k(f's_add_u32 s{sN1}, s{sTMP2}, 2')
    k(f's_add_u32 s{sN1G}, s{sN1}, s{sGRP}')
    k(f's_sub_u32 s{sN1G}, s{sN1G}, 1')
    k(f's_lshl_b32 s{sMSK}, 1, s{sTMP2}')
    k(f's_lshl_b32 s{sSPEC}, 2, s{sTMP2}')
    k(f's_cmp_lt_u32 s{sWQ}, 2')
    k(f's_cselect_b32 s{sMSK}, s{sMSK}, 0')
    k(f's_cselect_b32 s{sK16}, 0x10000, 0')
    k(f's_or_b32 s{sMSK}, s{sMSK}, s{sSPEC}')
    k(f's_or_b32 s{sMSK}, s{sMSK}, 0x10000')
    k(f's_lshl_b32 s{sSPEC}, 6, s{sTMP2}')
    k(f's_or_b32 s{sSPEC}, s{sSPEC}, s{sMSK}')
    k(f's_add_u32 s{sQSW}, s{sTMP2}, 1')
    k(f's_cmp_eq_u32 s{sGRP}, 0')
    k(f's_cselect_b32 s{sMSK}, s{sMSK}, s{sK16}')
    k(f's_cselect_b32 s{sSPEC}, s{sSPEC}, s{sK16}')
    k(f's_cselect_b32 s{sQSW}, s{sQSW}, 100')
    k(f's_cselect_b32 s{sFI}, s{sN1}, 100')
    k(f's_cselect_b32 s{sK16}, 64, 0')
    k('s_barrier')
    for c in range(1, LA):
        for g in wdma(c) + hload(c): emit_grp(g)
    k(f's_sub_u32 s{sTMP}, 15, s{sI}')
    k(f's_lshl_b32 s{sCTXA}, s{sI}, 2')
    k(f's_add_u32 s{sCTXA}, s{sCTXA}, s{sWQ}')
    k(f's_lshl_b32 s{sCTXA}, s{sCTXA}, 18')
    k(f's_lshl_b32 s{sCTXB}, s{sTMP}, 2')
    k(f's_add_u32 s{sCTXB}, s{sCTXB}, s{sWQ}')
    k(f's_lshl_b32 s{sCTXB}, s{sCTXB}, 18')
    k(f's_lshl_b32 s{sTMP}, s{sHEAD}, 13')
    k(f's_add_u32 s{sCTXA}, s{sCTXA}, s{sTMP}')
    k(f's_add_u32 s{sCTXB}, s{sCTXB}, s{sTMP}')
    k(f's_lshl_b32 s{sHB}, s{sHEAD}, 19')
    k(f's_lshl_b32 s{sTMP}, s{sWQ}, 12')
    k(f's_add_u32 s{sHB}, s{sHB}, s{sTMP}')
    k(f's_lshl_b32 s{sLB}, s{sGRP}, 16')
    k(f's_add_u32 s{sLB}, s{sLB}, s{sTMP}')
    k(f's_mov_b32 s{sC}, {SCALE}')
    k(f'v_lshrrev_b32 v{vH}, 5, v0')
    k(f'v_lshlrev_b32 v{vTR0}, 11, v{vH}')
    k(f'v_lshl_add_u32 v{vTR0}, v1, 6, v{vTR0}')
    k(f'v_and_b32 v{T+2}, 1, v{T}')
    k(f'v_lshl_add_u32 v{vTR0}, v{T+2}, 5, v{vTR0}')
    k(f'v_lshl_add_u32 v{vTR0}, v{T+1}, 3, v{vTR0}')
    k(f'v_add_u32 v{vTR1}, 0x10000, v{vTR0}')
    k(f'v_add_u32 v{vTR2}, 0x20000, v{vTR0}')
    k(f's_lshl_b32 s{sTMP}, s{sGRP}, 16')
    k(f'v_add_u32 v{vKV}, s{sTMP}, v{vL16}')
    k(f'v_and_b32 v{vDQ}, 31, v0')
    k(f's_lshl_b32 s{sTMP}, s{sWQ}, 5')
    k(f'v_add_u32 v{vDQ}, s{sTMP}, v{vDQ}')
    k(f'v_lshlrev_b32 v{T+2}, 2, v{vH}')
    k(f'v_sub_u32 v{vDQ}, v{vDQ}, v{T+2}')
    k(f'v_mov_b32 v{vNEG}, 0xf149f2ca')
    AF = [176, 192]
    def areads(c, ks, setn):
        out = []
        base = wbase(c); vb = [vTR0, vTR1, vTR2][base >> 16]; base &= 0xffff
        for nb in range(4):
            for qd in range(2):
                r = AF[setn] + 4 * nb + 2 * qd
                out.append(f'ds_read_b64_tr_b16 v[{r}:{r+1}], v{vb} offset:{base + (4*ks+qd)*1024 + nb*256}')
        return out
    def kinit(tile):
        out = []
        for e in range(4):
            pre = [f's_add_u32 s{sKO}, s{sHB}, {tile*16384}', f's_add_u32 m0, s{sLB}, {tile*16384}'] if e == 0 else []
            out.append(pre + [f'buffer_load_dwordx4 v{vL16}, s[12:15], s{sKO} offen offset:{e*1024} lds', ('k', tile)])
        return out
    k(f's_waitcnt vmcnt({vm.cnt(("w", 0))})')
    k('s_barrier')
    if OPT.get('qst'): stamp(k, 4)
    for s in areads(0, 0, 0): k(s)
    n = 0
    for c in range(10):
        grps = []
        if c + LA < 10: grps = wdma(c + LA) + hload(c + LA)
        if c == 10 - LA: grps = kinit(0)
        if c == 11 - LA: grps = kinit(1)
        for ks in range(4):
            cur = n & 1
            fill = []
            if ks == 0: k(f's_waitcnt vmcnt({vm.cnt(("h", c))}) lgkmcnt(0)')
            elif ks < 3 or c == 9: k('s_waitcnt lgkmcnt(0)')
            if ks == 3 and c < 9:
                k(f's_waitcnt vmcnt({vm.cnt(("w", c+1))}) lgkmcnt(0)')
                k('s_barrier')
                fill += areads(c + 1, 0, cur ^ 1)
            elif ks < 3:
                fill += areads(c, ks + 1, cur ^ 1)
            hr = HR + 4 * ((c % NH) * 4 + ks)
            for nb in range(4):
                a = O + 16 * nb
                k(f'v_mfma_f32_32x32x16_bf16 v[{a}:{a+15}], v[{AF[cur]+4*nb}:{AF[cur]+4*nb+3}], v[{hr}:{hr+3}], ' + ('0' if n == 0 else f'v[{a}:{a+15}]'))
                for _ in range(3):
                    if fill: k(fill.pop(0))
                if nb in (2, 3) and ks < 3 and grps: emit_grp(grps.pop(0))
            n += 1
            if OPT.get('qst') and ks == 3 and c in (1, 4, 7): stamp(k, 5 + c // 3)
        assert not grps
    for j in range(64):
        k(f'v_mul_f32 v{O+j}, s{sC}, v{O+j}')
        if j % 2 == 1 and j >= 3: k(f'v_cvt_pk_bf16_f32 v{Q+j//2-1}, v{O+j-3}, v{O+j-2}')
    k(f'v_cvt_pk_bf16_f32 v{Q+31}, v{O+62}, v{O+63}')
    LQX = k.lab('qx')
    k(f's_cmp_eq_u32 s{sGRP}, 0')
    k(f's_cbranch_scc1 {LQX}')
    k(f's_lshl_b32 s{sTMP}, s{sWQ}, 13')
    k(f's_add_u32 s{sTMP}, s{sTMP}, 0x20000')
    k(f'v_add_u32 v{T}, s{sTMP}, v{vL16}')
    for t in range(8):
        k(f'ds_write_b128 v{T}, v[{Q+4*t}:{Q+4*t+3}] offset:{t*1024}')
    k(f'{LQX}:')
    k(f's_waitcnt vmcnt({vm.cnt(("k", 0))})')
    k('s_barrier')
    def kread(slot, n):
        r = RG + 4 * (n % 4)
        return f'ds_read_b128 v[{r}:{r+3}], v{vKV} offset:{slot*16384 + n*1024}'
    def vread(slot, n):
        r = RG + 4 * (n % 4)
        return f'ds_read_b128 v[{r}:{r+3}], v{vKV} offset:{32768 + slot*16384 + n*1024}'
    for n in range(4): k(kread(0, n))
    for j in range(64): k(f'v_mov_b32 v{O+j}, 0')
    k(f'v_mov_b32 v{vLS}, 0')
    k(f's_mov_b32 s{sT}, 0')
    k(f's_mov_b64 s[{sKEX}:{sKEX+1}], -1')
    stamp(k, 1)

    rare = []
    def expseq(sb, pd, start):
        seq = []
        for r in range(17):
            if r < 16: seq.append(f'v_exp_f32 v{E + r % 8}, v{sb+r}')
            q = r - 1
            if q >= 0:
                if start and q == 0: pass
                elif start and q == 1: seq.append(f'v_add_f32 v{vTS}, v{E}, v{E+1}')
                else: seq.append(f'v_add_f32 v{vTS}, v{vTS}, v{E + q % 8}')
                if q % 2 == 1: seq.append(f'v_cvt_pk_bf16_f32 v{pd + q//2}, v{E + (q-1) % 8}, v{E + q % 8}')
        return seq
    def rowmax(sb, dst):
        k(f'v_max3_f32 v{dst}, v{sb}, v{sb+1}, v{sb+2}')
        k(f'v_max3_f32 v{dst+1}, v{sb+3}, v{sb+4}, v{sb+5}')
        for r in range(6, 30, 4):
            k(f'v_max3_f32 v{dst}, v{dst}, v{sb+r}, v{sb+r+1}')
            k(f'v_max3_f32 v{dst+1}, v{dst+1}, v{sb+r+2}, v{sb+r+3}')
        k(f'v_max3_f32 v{dst}, v{dst}, v{sb+30}, v{sb+31}')
        k(f'v_max_f32 v{dst}, v{dst}, v{dst+1}')
        k(f'v_mov_b32 v{dst+1}, v{dst}')
        k(f'v_permlane32_swap_b32 v{dst}, v{dst+1}')
        k(f'v_max_f32 v{dst}, v{dst}, v{dst+1}')
    def first_init(Sc):
        rowmax(Sc, T)
        for r in range(32): k(f'v_sub_f32 v{Sc+r}, v{Sc+r}, v{T}')
        for r in range(16): k(f'v_sub_f32 v{NM+r}, v{NM+r}, v{T}')
    def store_scaled(rv, sbase, blocks):
        for dt in blocks:
            for j in range(16):
                k(f'v_mul_f32 v{O+16*dt+j}, v{O+16*dt+j}, v{rv}')
            for tt in range(2):
                d = T + 4 + 4 * tt
                for j in range(4):
                    k(f'v_cvt_pk_bf16_f32 v{d+j}, v{O+16*dt+8*tt+2*j}, v{O+16*dt+8*tt+2*j+1}')
                if dt * 2 + tt < 4:
                    k(f'buffer_store_dwordx4 v[{d}:{d+3}], v{vL16}, s[20:23], s{sbase} offen offset:{(dt*2+tt)*1024} ' + OPT.get('stat',''))
                else:
                    k(f's_add_u32 s{sTMP}, s{sbase}, 4096')
                    k(f'buffer_store_dwordx4 v[{d}:{d+3}], v{vL16}, s[20:23], s{sTMP} offen offset:{(dt*2+tt-4)*1024} ' + OPT.get('stat',''))
    def check(Sp, Sn, p0):
        LR = k.lab('r2'); LB = k.lab('r2b')
        k(f'v_cmp_lt_f32 vcc, {THR}, v{vTS}')
        k(f's_cbranch_vccnz {LR}')
        k(f'{LB}:')
        k(f'v_add_f32 v{vLS}, v{vLS}, v{vTS}')
        def blk():
            k(f'{LR}:')
            k('s_nop 15')
            rowmax(Sp, T)
            k(f'v_max_f32 v{T}, 0, v{T}')
            k(f'v_exp_f32 v{T+1}, -v{T}')
            for r in range(32): k(f'v_sub_f32 v{Sp+r}, v{Sp+r}, v{T}')
            for r in range(32): k(f'v_sub_f32 v{Sn+r}, v{Sn+r}, v{T}')
            for r in range(16): k(f'v_sub_f32 v{NM+r}, v{NM+r}, v{T}')
            for r in range(64): k(f'v_mul_f32 v{O+r}, v{O+r}, v{T+1}')
            k(f'v_mul_f32 v{vLS}, v{vLS}, v{T+1}')
            for s in expseq(Sp, p0, True) + expseq(Sp + 16, P1, False): k(s)
            k(f's_branch {LB}')
        rare.append(blk)
    def special(par, first):
        Sc = S[par]
        LS_ = k.lab('sp'); LB = k.lab('spb')
        k(f's_bitcmp1_b32 s{sSPEC}, s{sT}')
        k(f's_cbranch_scc1 {LS_}')
        k(f'{LB}:')
        def blk():
            L1 = k.lab('sp1')
            k(f'{LS_}:')
            k('s_nop 15')
            k(f's_bitcmp1_b32 s{sMSK}, s{sT}')
            k(f's_cbranch_scc0 {L1}')
            if par == 1:
                k(f'v_subrev_u32 v{T+2}, 64, v{vDQ}')
            else:
                k(f's_cmp_eq_u32 s{sT}, 16')
                k(f's_cselect_b32 s{sTMP}, s{sK16}, 0')
                k(f'v_subrev_u32 v{T+2}, s{sTMP}, v{vDQ}')
            for r in range(32 + 3):
                if r < 32:
                    cr = 32 * (r >> 4) + 8 * ((r & 15) >> 2) + (r & 3)
                    sp = sMK + 2 * (r % 4)
                    k(f'v_cmp_gt_i32_e64 s[{sp}:{sp+1}], {cr}, v{T+2}')
                if r >= 3:
                    q = r - 3; sp = sMK + 2 * (q % 4)
                    k(f'v_cndmask_b32_e64 v{Sc+q}, v{Sc+q}, v{vNEG}, s[{sp}:{sp+1}]')
            k(f'{L1}:')
            if first:
                pass
            elif par == 1:
                k(f's_cmp_lg_u32 s{sT}, s{sQSW}')
                k(f's_cbranch_scc1 {LB}')
                k(f's_lshl_b32 s{sTMP}, s{sWQ}, 13')
                k(f's_add_u32 s{sTMP}, s{sTMP}, 0x20000')
                k(f'v_add_u32 v{T+4}, s{sTMP}, v{vL16}')
                for t in range(8):
                    k(f'ds_read_b128 v[{Q+4*t}:{Q+4*t+3}], v{T+4} offset:{t*1024}')
                for r in range(16): k(f'v_mov_b32 v{NM+r}, 0')
                k('s_waitcnt lgkmcnt(0)')
            else:
                k(f's_cmp_lg_u32 s{sT}, s{sFI}')
                k(f's_cbranch_scc1 {LB}')
                first_init(Sc)
            k(f's_branch {LB}')
        rare.append(blk)
    def dma_jobs(par):
        g = []
        g.append([f's_lshl_b32 s{sVO}, s{sT}, 1', f's_sub_u32 s{sVO}, s{sVO}, s{sN1G}', f's_cmp_lt_u32 s{sT}, s{sN1}',
                  f's_cselect_b32 s{sVO}, s{sT}, s{sVO}', f's_lshl_b32 s{sVO}, s{sVO}, 14', f's_add_u32 s{sVO}, s{sVO}, s{sHB}',
                  f's_add_u32 m0, s{sLB}, {32768 + par*16384}',
                  f'buffer_load_dwordx4 v{vL16}, s[16:19], s{sVO} offen lds'])
        for e in range(1, 4):
            g.append([f'buffer_load_dwordx4 v{vL16}, s[16:19], s{sVO} offen offset:{e*1024} lds'])
        g.append([f's_add_u32 s{sTMP2}, s{sT}, 2', f's_lshl_b32 s{sKO}, s{sTMP2}, 1', f's_sub_u32 s{sKO}, s{sKO}, s{sN1G}',
                  f's_cmp_lt_u32 s{sTMP2}, s{sN1}', f's_cselect_b32 s{sKO}, s{sTMP2}, s{sKO}', f's_lshl_b32 s{sKO}, s{sKO}, 14',
                  f's_add_u32 s{sKO}, s{sKO}, s{sHB}', f's_cmp_lt_u32 s{sT}, 15', f's_cselect_b64 s[{sKEX}:{sKEX+1}], -1, 0',
                  f's_add_u32 m0, s{sLB}, {par*16384}'])
        for e in range(4):
            g.append([f's_mov_b64 exec, s[{sKEX}:{sKEX+1}]',
                      f'buffer_load_dwordx4 v{vL16}, s[12:15], s{sKO} offen offset:{e*1024} lds', 's_mov_b64 exec, -1'])
        return g
    def spread(nitems, ngaps):
        return [(nitems * (i + 1)) // ngaps - (nitems * i) // ngaps for i in range(ngaps)]
    BARP = OPT.get('barp', 13)
    def step(par, first):
        Sc, Sp = S[par], S[par ^ 1]
        jobs = dma_jobs(par)
        fill = [] if first else expseq(Sp + 16, P1, False)
        cnt = spread(len(fill), 15) + [0]
        for n in range(16):
            kb, tq = n >> 3, n & 7
            a = Sc + 16 * kb; r = RG + 4 * (n % 4)
            if n <= 12: k('s_waitcnt lgkmcnt(3)')
            elif n <= BARP: k(f's_waitcnt lgkmcnt({15 - n})')
            srcc = f'v[{a}:{a+15}]' if tq else ('0' if first else f'v[{NM}:{NM+15}]')
            k(f'v_mfma_f32_32x32x16_bf16 v[{a}:{a+15}], v[{r}:{r+3}], v[{Q+4*tq}:{Q+4*tq+3}], {srcc}')
            if n + 4 < 16: k(kread(par, n + 4))
            if n == BARP:
                k('s_waitcnt vmcnt(0) lgkmcnt(0)')
                k('s_barrier')
                if not first:
                    for m in range(0, n - 11): k(vread(par ^ 1, m))
            elif n > BARP and not first: k(vread(par ^ 1, n - 12))
            for _ in range(cnt[n]): k(fill.pop(0))
            if n >= BARP and n < 15:
                for s in jobs.pop(0): k(s)
        if not first: check(Sp, Sc, P0[par ^ 1])
        special(par, first)
        if first:
            for r in range(16): k(f'v_mov_b32 v{NM+r}, 0')
            first_init(Sc)
        fill = expseq(Sc, P0[par], True)
        if first:
            for g in jobs:
                for s in g: k(s)
            for s in fill: k(s)
            for n in range(4): k(kread(par ^ 1, n))
        else:
            pv_phase(P0[par ^ 1], par ^ 1, fill, jobs, par ^ 1)
        if par == 0 and not first:
            LF = k.lab('fin'); LB = k.lab('finb')
            k(f's_cmp_eq_u32 s{sT}, s{sFI}')
            k(f's_cbranch_scc1 {LF}')
            k(f'{LB}:')
            def blk():
                k(f'{LF}:')
                k('s_nop 15')
                k(f'v_mov_b32 v{T}, v{vLS}')
                k(f'v_mov_b32 v{T+1}, v{vLS}')
                k(f'v_permlane32_swap_b32 v{T}, v{T+1}')
                k(f'v_add_f32 v{T}, v{T}, v{T+1}')
                k(f'v_rcp_f32 v{T}, v{T}')
                store_scaled(T, sCTXA, range(4))
                for j in range(64): k(f'v_mov_b32 v{O+j}, 0')
                k(f'v_mov_b32 v{vLS}, 0')
                k(f's_branch {LB}')
            rare.append(blk)
        k(f's_add_u32 s{sT}, s{sT}, 1')
    def pv_phase(p0, vslot, fill, jobs, knext):
        cnt = spread(len(fill), 16)
        for n in range(16):
            ks, dt = n >> 2, n & 3
            a = O + 16 * dt; r = RG + 4 * (n % 4); p = (p0 if ks < 2 else P1) + 4 * (ks & 1)
            k(f's_waitcnt lgkmcnt({3 if knext is not None else min(3, 15 - n)})')
            k(f'v_mfma_f32_32x32x16_bf16 v[{a}:{a+15}], v[{r}:{r+3}], v[{p}:{p+3}], v[{a}:{a+15}]')
            if n + 4 < 16: k(vread(vslot, n + 4))
            elif knext is not None: k(kread(knext, n - 12))
            for _ in range(cnt[n]): k(fill.pop(0))
            if jobs:
                for s in jobs.pop(0): k(s)
        assert not jobs

    step(0, True)
    LOOP = k.lab('loop')
    k(f'{LOOP}:')
    step(1, False)
    step(0, False)
    k(f's_cmp_lt_u32 s{sT}, 17')
    k(f's_cbranch_scc1 {LOOP}')
    stamp(k, 2)
    k('s_waitcnt vmcnt(0) lgkmcnt(0)')
    k('s_barrier')
    for n in range(4): k(vread(0, n))
    for s in expseq(S[0] + 16, P1, False): k(s)
    check(S[0], S[1], P0[0])
    pv_phase(P0[0], 0, [], [], None)
    k(f'v_mov_b32 v{vTS}, v{vLS}')
    k(f'v_permlane32_swap_b32 v{vLS}, v{vTS}')
    k(f'v_add_f32 v{vLS}, v{vLS}, v{vTS}')
    vMC = vTS
    k(f'v_sub_f32 v{vMC}, 0, v{NM}')
    k(f'v_mov_b32 v{T}, v{vMC}')
    k(f'v_mov_b32 v{T+1}, v{vLS}')
    k(f's_lshl_b32 s{sTMP}, s{sW}, 9')
    k(f's_add_u32 s{sTMP}, s{sTMP}, 0x20000')
    k(f'v_lshlrev_b32 v{T+2}, 3, v0')
    k(f'v_add_u32 v{T+2}, s{sTMP}, v{T+2}')
    k(f'ds_write_b64 v{T+2}, v[{T}:{T+1}]')
    k(f'v_xor_b32 v{T+2}, 0x800, v{T+2}')
    k(f's_lshl_b32 s{sTMP}, s{sWQ}, 13')
    k(f'v_add_u32 v{T+3}, s{sTMP}, v{vKV}')
    k(f'v_xor_b32 v{T+4}, 0x10000, v{T+3}')
    LB2 = k.lab('mB'); LE = k.lab('mE')
    k(f's_cmp_eq_u32 s{sGRP}, 1')
    k(f's_cbranch_scc1 {LB2}')
    def merge(send, keep):
        for j in range(8):
            r = O + 16 * send[0] + 4 * j
            k(f'ds_write_b128 v{T+3}, v[{r}:{r+3}] offset:{j*1024}')
        k('s_waitcnt lgkmcnt(0)')
        k('s_barrier')
        k(f'ds_read_b64 v[{T+6}:{T+7}], v{T+2}')
        for j in range(8):
            r = S[0] + 4 * j
            k(f'ds_read_b128 v[{r}:{r+3}], v{T+4} offset:{j*1024}')
        k('s_waitcnt lgkmcnt(8)')
        k(f'v_max_f32 v{T}, v{vMC}, v{T+6}')
        k(f'v_sub_f32 v{T+1}, v{vMC}, v{T}')
        k(f'v_sub_f32 v{T+2}, v{T+6}, v{T}')
        k(f'v_exp_f32 v{T+1}, v{T+1}')
        k(f'v_exp_f32 v{T+2}, v{T+2}')
        k(f'v_mul_f32 v{T}, v{vLS}, v{T+1}')
        k(f'v_fmac_f32 v{T}, v{T+7}, v{T+2}')
        k(f'v_rcp_f32 v{T}, v{T}')
        k(f'v_mul_f32 v{T+1}, v{T+1}, v{T}')
        k(f'v_mul_f32 v{T+2}, v{T+2}, v{T}')
        k('s_waitcnt lgkmcnt(0)')
        for j in range(32):
            o = O + 16 * keep[0] + j
            k(f'v_mul_f32 v{o}, v{o}, v{T+1}')
            k(f'v_fmac_f32 v{o}, v{S[0]+j}, v{T+2}')
        for dt in keep:
            for tt in range(2):
                d = T + 4 + 4 * tt
                for j in range(4):
                    k(f'v_cvt_pk_bf16_f32 v{d+j}, v{O+16*dt+8*tt+2*j}, v{O+16*dt+8*tt+2*j+1}')
                k(f's_add_u32 s{sTMP}, s{sCTXB}, {(dt >> 1) * 4096}')
                k(f'buffer_store_dwordx4 v[{d}:{d+3}], v{vL16}, s[20:23], s{sTMP} offen offset:{((dt&1)*2+tt)*1024} ' + OPT.get('stat',''))
    merge([2, 3], [0, 1])
    k(f's_branch {LE}')
    k(f'{LB2}:')
    merge([0, 1], [2, 3])
    k(f'{LE}:')
    if OPT.get('stamp'):
        k('s_waitcnt vmcnt(0)')
        stamp(k, 3)
        stamp_out(k, 8 if OPT.get('qst') else 4, f's{sW}')
    k('s_endpgm')
    i = 0
    while i < len(rare):
        rare[i](); i += 1
    return k, ('att_kernel', 256, 512, 163840)

def kernels():
    ks = [k_att()]
    try:
        import gen4
        ks += gen4.kernels()
    except ImportError:
        pass
    return ks
```

```python
from gen import *
from gen2 import VM, stamp, stamp_out, lstamp, lstamp_out

HTAB = OPT.get('htab', 0x7520)
class LG:
    def __init__(self): self.n = 0; self.tags = {}; self.done = 0
    def issue(self, tag=None):
        self.n += 1
        if tag is not None: self.tags[tag] = self.n
    def cnt(self, *tags):
        c = min(self.n - self.tags[t] for t in tags)
        return min(c, 15)
    def waited(self, c): self.done = max(self.done, self.n - c)
    def is_done(self, tag): return tag in self.tags and self.done >= self.tags[tag]

def k_kv2():
    k = Kernel('kv_kernel')
    srds(k, [(4, A_CKV, 0, SIZES[A_CKV]), (8, A_WUK, 0, SIZES[A_WUK]), (12, A_WUV, 0, SIZES[A_WUV]),
             (16, WS, WS_KF, 1 << 24), (20, WS, WS_VF, 1 << 24), (24, IN_C, 0, SIZES[IN_C]),
             (28, W_MOD, 0, SIZES[W_MOD]), (32, WS, WS_MODB, 2560), (36, DBG, 0, 256), (40, A_X, 0, SIZES[A_X]),
             (44, WS, WS_H1, 2048*640*2), (48, W_MOD, 0, SIZES[W_MOD]), (52, WS, WS_MOD, 64), (56, DBG, 0, 4),
             (84, WS, WS_MODB, 32)])
    guard(k, 256)
    stamp(k, 0)
    if OPT.get('lst'): k('v_mov_b32 v63, 0')
    lstamp(k, 'start', 63)
    sW, sKT, sH0, sT, sT2, sCL, sWL, sWR, sOB, sXO, sHO = 3, 92, 93, 94, 95, 96, 97, 98, 99, 100, 101
    vCg, vWA, vWB, vCr, vTA, vTB, vL16, vL4 = 2, 4, 5, 6, 10, 11, 14, 15
    XP, FL, T0, T1 = 16, 21, 22, 23
    STG, RG, ACC, CF = 24, 32, 64, 128
    sH1, sOB2, sCB, sONE = 88, 89, 90, 91
    M = 224
    NR = 7
    vm = VM(); lg = LG()
    k('v_lshrrev_b32 v1, 6, v0')
    k(f'v_lshrrev_b32 v{T0}, 1, v0')
    k(f'v_and_b32 v{T1}, 1, v0')
    k('v_and_b32 v0, 63, v0')
    k(f'v_readfirstlane_b32 s{sW}, v1')
    k(f's_and_b32 s{sT}, s2, 7')
    k(f's_lshr_b32 s{sT2}, s2, 3')
    k(f's_mul_i32 s{sCB}, s{sT}, 10')
    k(f's_lshl_b32 s{sKT}, s{sCB}, 1')
    k(f's_add_u32 s{sKT}, s{sKT}, 70')
    k('s_cmp_lt_u32 s2, 80')
    k(f's_cselect_b32 s{sCB}, s{sCB}, s{sKT}')
    k(f's_add_u32 s{sCB}, s{sCB}, s{sT2}')
    k(f's_movk_i32 s{sKT}, 7680')
    k(f'v_mul_lo_u32 v{M+26}, v{T0}, s{sKT}')
    k(f'v_lshl_add_u32 v{M+26}, v{T1}, 4, v{M+26}')
    k(f'v_lshlrev_b32 v{M+27}, 1, v{T0}')
    k(f's_lshl_b32 s{sOB}, s{sCB}, 5')
    k(f'v_add_u32 v{M+26}, s{sOB}, v{M+26}')
    def modloads():
        for p in range(3):
            k(f's_mov_b32 s{sKT if first_ml[0] else sT}, {p*256*7680}')
            k(f'buffer_load_dwordx4 v[{M+4+4*p}:{M+7+4*p}], v{M+26}, s[28:31], s{sKT if first_ml[0] else sT} offen'); vm.issue(('mw', p))
        for p in range(3):
            k(f'buffer_load_ushort v{M+p}, v{M+27}, s[24:27], 0 offen offset:{p*512}'); vm.issue('mc')
    first_ml = [True]
    LE = k.lab('noearly')
    k('s_cmp_ge_u32 s2, 80')
    k(f's_cbranch_scc1 {LE}')
    modloads()
    k(f'{LE}:')
    first_ml[0] = False
    k('s_cmp_lt_u32 s2, 240')
    k(f's_cselect_b32 s30, {SIZES[W_MOD]}, 0')
    k(f's_cselect_b32 s54, 64, 0')
    k('s_cmp_lt_u32 s2, 80')
    k(f's_cselect_b32 s30, 0, s30')
    k(f's_lshr_b32 s{sKT}, s2, 5')
    k(f's_and_b32 s{sT2}, s{sT2}, 3')
    for (dst, fl) in ((sH0, 0), (sH1, 2)):
        if fl: k(f's_xor_b32 s{sT2}, s{sT2}, 2')
        k(f's_lshl_b32 s{dst}, s{sT2}, 2')
        k(f's_lshr_b32 s{dst}, {HTAB}, s{dst}')
        k(f's_and_b32 s{dst}, s{dst}, 7')
        k(f's_xor_b32 s{dst}, s{dst}, s{sT}')
        k(f's_lshl_b32 s{sOB}, s{sT2}, 3')
        k(f's_add_u32 s{dst}, s{dst}, s{sOB}')
    k('v_lshrrev_b32 v1, 3, v0')
    k(f's_lshl_b32 s{sT}, s{sKT}, 8')
    k(f's_lshl_b32 s{sT2}, s{sW}, 5')
    k(f's_add_u32 s{sT}, s{sT}, s{sT2}')
    k(f'v_add_u32 v1, s{sT}, v1')
    k(f'v_lshrrev_b32 v{vWA}, 4, v0')
    k(f'v_and_b32 v{vWB}, 7, v0')
    k(f'v_xor_b32 v{vWB}, v{vWB}, v{vWA}')
    k(f'v_lshlrev_b32 v{vWB}, 4, v{vWB}')
    k(f'v_lshl_add_u32 v{vCg}, v1, 10, v{vWB}')
    k(f'v_xor_b32 v{vCg+1}, 64, v{vCg}')
    k(f's_mul_i32 s{sCL}, s{sW}, 12288')
    def cdma(s):
        out = []
        for e in range(4):
            def f(e=e):
                k(f's_add_u32 m0, s{sCL}, {(s % 3) * 4096 + e * 1024}')
                k(f's_mov_b32 s{sT}, {s * 128 + e * 8192}')
                k(f'buffer_load_dwordx4 v{vCg + (e & 1)}, s[4:7], s{sT} offen lds')
                vm.issue(('c', s))
            out.append(f)
        return out
    for f in cdma(0): f()
    k('v_bfe_u32 v1, v0, 2, 2')
    k(f'v_and_b32 v{vTA}, 3, v0')
    k(f's_lshl_b32 s{sT}, s{sW}, 3')
    k(f'v_add_u32 v{vWB}, s{sT}, v1')
    k(f'v_lshlrev_b32 v{vWB}, 13, v{vWB}')
    k(f'v_lshl_add_u32 v{vWA}, v{vWA}, 6, v{vWB}')
    k(f'v_lshl_add_u32 v{vWA}, v{vTA}, 4, v{vWA}')
    k(f's_lshl_b32 s{sT}, s{sH0}, 8')
    k(f'v_add_u32 v{vWA}, s{sT}, v{vWA}')
    k(f's_lshl_b32 s{sWL}, s{sW}, 11')
    k(f's_add_u32 s{sWL}, s{sWL}, 98304')
    LV = k.lab('V')
    k('s_bitcmp1_b32 s2, 4')
    k(f's_cbranch_scc1 {LV}')
    vm0 = (vm.n, dict(vm.tags))
    rare = []
    def variant(isV):
        vm.n, vm.tags = vm0[0], dict(vm0[1])
        lg.__init__()
        wsrd = 's[12:15]' if isV else 's[8:11]'
        osrd = 's[20:23]' if isV else 's[16:19]'
        def wdma(s):
            out = []
            for e in range(2):
                def f(e=e):
                    k(f's_add_u32 m0, s{sWL}, {(s % 3) * 16384 + e * 1024}')
                    k(f's_mov_b32 s{sT}, {s * 524288 + e * 32768}')
                    k(f'buffer_load_dwordx4 v{vWA}, {wsrd}, s{sT} offen lds')
                    vm.issue(('w', s))
                out.append(f)
            return out
        def gdma(g):
            out = []
            for e in range(4):
                def f(e=e):
                    if g < 3: k(f's_add_u32 m0, s{sCL}, {[8192, 0, 4096][g] + e * 1024}')
                    else:
                        k(f's_lshl_b32 m0, s{sW}, 12')
                        k(f's_add_u32 m0, m0, {131072 + e * 1024}')
                    k(f's_add_u32 s{sT}, s{sWR}, {((g & 1) * 256 + 8 * e) * 8192 + (g >> 1) * 128}')
                    k(f'buffer_load_dwordx4 v{vWB}, {wsrd}, s{sT} offen lds')
                    vm.issue(('g', g))
                out.append(f)
            return out
        for f in wdma(0): f()
        PRO = OPT.get('kvpro', 2)
        for s in range(1, PRO):
            for f in cdma(s) + wdma(s): f()
        k(f's_lshl_b32 s{sT}, s2, 3')
        k(f's_add_u32 s{sT}, s{sT}, s{sW}')
        k(f's_mul_i32 s{sXO}, s{sT}, 1280')
        k(f'v_lshlrev_b32 v{vL4}, 2, v0')
        def xl():
            for j in range(5):
                k(f'buffer_load_dword v{XP+j}, v{vL4}, s[40:43], s{sXO} offen offset:{j*256}'); vm.issue('x')
        k(f's_lshr_b32 s{sHO}, s{sT}, 5')
        k(f's_mul_i32 s{sHO}, s{sHO}, 40960')
        k(f's_and_b32 s{sT}, s{sT}, 31')
        k(f's_lshl_b32 s{sT}, s{sT}, 4')
        k(f's_add_u32 s{sHO}, s{sHO}, s{sT}')
        k(f'v_lshrrev_b32 v{M+28}, 3, v{T0}')
        k(f'v_lshlrev_b32 v{M+28}, 6, v{M+28}')
        k(f'v_lshl_add_u32 v{M+28}, v{T1}, 5, v{M+28}')
        k(f'v_add_u32 v{M+28}, 147456, v{M+28}')
        k(f'v_lshrrev_b32 v{T0}, 5, v0')
        k(f'v_bfe_u32 v{T1}, v0, 1, 3')
        k(f'v_xor_b32 v{T1}, v{T1}, v{T0}')
        k(f'v_and_b32 v{vCr}, 31, v0')
        k(f'v_lshlrev_b32 v{vCr}, 7, v{vCr}')
        k(f'v_lshl_add_u32 v{vCr}, v{T1}, 4, v{vCr}')
        for j in range(1, 4): k(f'v_xor_b32 v{vCr+j}, {32*j}, v{vCr}')
        for j in range(4): k(f'v_add_u32 v{vCr+j}, s{sCL}, v{vCr+j}')
        k(f'v_bfe_u32 v{T1}, v0, 4, 1')
        k(f'v_lshl_add_u32 v{vWB}, v{T0}, 2, v1')
        k(f'v_lshlrev_b32 v{vWB}, 13, v{vWB}')
        k(f'v_lshl_add_u32 v{vWB}, v{T1}, 6, v{vWB}')
        k(f'v_lshl_add_u32 v{vWB}, v{vTA}, 4, v{vWB}')
        k(f's_lshl_b32 s{sT}, s{sH1}, 8')
        k(f'v_add_u32 v{vWB}, s{sT}, v{vWB}')
        k(f's_lshl_b32 s{sWR}, s{sW}, 18')
        k(f'v_lshlrev_b32 v{vTA}, 3, v{vTA}')
        k(f'v_lshl_add_u32 v{vTA}, v1, 6, v{vTA}')
        k(f'v_lshl_add_u32 v{vTA}, v{T1}, 5, v{vTA}')
        k(f'v_lshl_add_u32 v{vTB}, v{T0}, 10, v{vTA}')
        k(f'v_lshl_add_u32 v{vTA}, v{T0}, 11, v{vTA}')
        k(f'v_add_u32 v{vTA}, 98304, v{vTA}')
        k(f'v_add_u32 v{vTB+1}, 0x10000, v{vTB}')
        k(f'v_add_u32 v{vTB+2}, 0x20000, v{vTB}')
        k(f'v_lshlrev_b32 v{vL16}, 4, v0')
        k(f's_lshl_b32 s{sOB}, s{sKT}, 3')
        k(f's_add_u32 s{sOB}, s{sOB}, s{sW}')
        k(f's_lshl_b32 s{sOB}, s{sOB}, 13')
        k(f's_lshl_b32 s{sT}, s{sH1}, 19')
        k(f's_add_u32 s{sOB2}, s{sOB}, s{sT}')
        k(f's_lshl_b32 s{sT}, s{sH0}, 19')
        k(f's_add_u32 s{sOB}, s{sOB}, s{sT}')
        k(f's_lshl_b32 s{sT}, s{sCB}, 6')
        k(f's_add_u32 s52, s52, s{sT}')
        k(f's_addc_u32 s53, s53, 0')
        k(f's_lshl_b32 s{sT}, s{sCB}, 5')
        k(f's_add_u32 s84, s84, s{sT}')
        k(f's_addc_u32 s85, s85, 0')
        k('s_cmp_lt_u32 s2, 80')
        k('s_cselect_b32 s58, 4, 0')
        k('s_cselect_b32 s86, 32, 0')
        k(f's_cmp_eq_u32 s{sW}, 0')
        k('s_cselect_b32 s54, s54, 0')
        k('s_cselect_b32 s58, s58, 0')
        k('s_cselect_b32 s86, s86, 0')
        k(f's_cmp_lt_u32 s{sCB}, 40')
        k(f's_cselect_b32 s{sONE}, 0, 1.0')

        def W(fn): return fn
        qv = []
        def add(n0, items):
            for it in items: qv.append((n0, it))
        m1 = [lambda: k(f's_waitcnt vmcnt({vm.cnt("mc")})'), f's_mov_b32 s{sT2}, {LOG2E}']
        for p in range(3):
            r = M + p; t = M + 24 + (p & 1)
            m1 += [f'v_lshlrev_b32 v{r}, 16, v{r}', f'v_mul_f32 v{t}, s{sT2}, v{r}', f'v_exp_f32 v{t}, -v{t}',
                   f'v_add_f32 v{t}, 1.0, v{t}', f'v_rcp_f32 v{t}, v{t}', f'v_mul_f32 v{r}, v{r}, v{t}',
                   f'v_cvt_pk_bf16_f32 v{r}, v{r}, v{r}', f'v_lshlrev_b32 v{r}, 16, v{r}']
        A8 = M + 16
        for p in range(3):
            m1.append(lambda p=p: k(f's_waitcnt vmcnt({vm.cnt(("mw", p))})'))
            for j in range(4):
                w = M + 4 + 4 * p + j
                m1 += [f'v_lshlrev_b32 v{M+24}, 16, v{w}', f'v_and_b32 v{M+25}, 0xffff0000, v{w}']
                if p == 0: m1 += [f'v_mul_f32 v{A8+2*j}, v{M+24}, v{M}', f'v_mul_f32 v{A8+2*j+1}, v{M+25}, v{M}']
                else: m1 += [f'v_fmac_f32 v{A8+2*j}, v{M+24}, v{M+p}', f'v_fmac_f32 v{A8+2*j+1}, v{M+25}, v{M+p}']
        for ror in (2, 4, 8):
            for j in range(8):
                m1.append(f'v_add_f32_dpp v{A8+j}, v{A8+j}, v{A8+j} row_ror:{ror} row_mask:0xf bank_mask:0xf')
        def dsw():
            k(f'ds_write_b128 v{M+28}, v[{A8}:{A8+3}]'); lg.issue()
            k(f'ds_write_b128 v{M+28}, v[{A8+4}:{A8+7}] offset:16'); lg.issue('mwr')
        m1.append(dsw)
        k(f'v_lshrrev_b32 v{M+29}, 4, v0'); k(f'v_lshlrev_b32 v{M+29}, 9, v{M+29}'); k(f'v_and_b32 v{M+25}, 15, v0')
        k(f'v_lshl_add_u32 v{M+29}, v{M+25}, 2, v{M+29}'); k(f'v_add_u32 v{M+29}, 147456, v{M+29}')
        k(f'v_lshlrev_b32 v{M+30}, 1, v0')
        LE2 = k.lab('noearly2')
        k('s_cmp_ge_u32 s2, 80')
        k(f's_cbranch_scc1 {LE2}')
        for it in m1:
            if callable(it): it()
            else: k(it)
        k(f'{LE2}:')
        del lg.tags['mwr']
        def part2(early):
            m2 = []
            for i in range(8):
                def f(i=i):
                    k(f'ds_read_b32 v{A8+i}, v{M+29} offset:{i*64}'); lg.issue(('mr', i))
                m2.append(f)
            m2.append('GAP')
            def wl():
                c = lg.cnt(('mr', 7)); k(f's_waitcnt lgkmcnt({c})'); lg.waited(c)
            m2.append(wl)
            for i in (0, 2, 4, 6): m2.append(f'v_add_f32 v{A8+i}, v{A8+i}, v{A8+i+1}')
            m2 += [f'v_add_f32 v{A8}, v{A8}, v{A8+2}', f'v_add_f32 v{A8+4}, v{A8+4}, v{A8+6}', f'v_add_f32 v{A8}, v{A8}, v{A8+4}',
                   f'v_mov_b32 v{A8+1}, v{A8}', f'v_permlane32_swap_b32 v{A8}, v{A8+1}', f'v_add_f32 v{A8}, v{A8}, v{A8+1}',
                   f'v_mov_b32 v{A8+1}, v{A8}', f'v_permlane16_swap_b32 v{A8}, v{A8+1}', f'v_add_f32 v{A8}, v{A8}, v{A8+1}',
                   f'v_cvt_pk_bf16_f32 v{A8}, v{A8}, v{A8}', f'v_lshlrev_b32 v{A8}, 16, v{A8}']
            if early:
                m2 += [f'v_add_f32 v{A8+1}, s{sONE}, v{A8}', f'v_cvt_pk_bf16_f32 v{A8+1}, v{A8+1}, v{A8+1}']
                def mst():
                    k(f'buffer_store_short v{A8+1}, v{M+30}, s[84:87], 0 offen sc1'); vm.issue('mst')
                    k(f's_lshl_b32 s{sT}, s86, 1')
                    k(f's_mov_b32 s{sONE}, s54')
                    k(f's_mov_b32 s54, s{sT}')
                    k(f'buffer_store_dword v{A8}, v{vL4}, s[52:55], 0 offen'); vm.issue()
                    k(f's_sub_u32 s54, s{sONE}, s54')
                m2 += [mst, 'E2END']
            else:
                def mst():
                    k(f'buffer_store_dword v{A8}, v{vL4}, s[52:55], 0 offen'); vm.issue()
                m2 += [mst, 'L2END']
            return m2
        add(0, part2(True))
        def flg():
            k(f's_waitcnt vmcnt({vm.cnt("mst")})')
            k(f'v_mov_b32 v{T0}, 1')
            k(f'buffer_atomic_add v{T0}, v{vL4}, s[56:59], 0 offen sc1'); vm.issue()
        def fl():
            k(f'buffer_load_dword v{FL}, off, s[36:39], 0 sc1'); vm.issue('fl')
        def pack(t, d):
            a = ACC + 16 * t
            return [f'v_cvt_pk_bf16_f32 v{d+j}, v{a+2*j}, v{a+2*j+1}' for j in range(8)]
        def store(d, head, nbh):
            out = []
            for tt in range(2):
                def f(tt=tt):
                    off = (tt * 4096 + nbh * 1024 if isV else (2 * nbh + tt) * 1024)
                    k(f's_add_u32 s{sT}, s{sOB2 if head else sOB}, {off & ~4095}')
                    k(f'buffer_store_dwordx4 v[{d+4*tt}:{d+4*tt+3}], v{vL16}, {osrd}, s{sT} offen offset:{off & 4095} ' + OPT.get('stkv', 'sc1'))
                    vm.issue()
                out.append(f)
            return out
        stq = store(STG, 0, 0) + store(104, 0, 1) + store(96, 0, 2) + store(112, 0, 3)
        X, U0, U1, U2 = 208, 218, 219, 220
        MD = [1, 2, 3, 4, 6, 7, 8, 9, FL, T0]
        LR = k.lab('lnw'); LB = k.lab('lnb'); LC = k.lab('lnc')
        def chk():
            assert not any(tg in ('c', 'w') for tg, _, _ in qd_)
            k(f's_waitcnt vmcnt({vm.cnt("fl")})')
            k(f'v_readfirstlane_b32 s{sT}, v{FL}')
            k(f's_cmp_lt_u32 s{sT}, {OPT.get("kvthr", 80)}')
            k(f's_cbranch_scc1 {LR}')
            k(f'{LB}:')
            for j in range(10):
                k(f'buffer_load_dword v{MD[j]}, v{vL4}, s[32:35], 0 offen offset:{j*256} sc1'); vm.issue('md')
            k(f'{LC}:')
        def blk():
            L1 = k.lab('sp')
            k(f'{LR}:')
            k('s_nop 15')
            k(f's_movk_i32 s{sT2}, {OPT.get("kvspin", 2000)}')
            k(f'{L1}:')
            k('s_sleep 2')
            k(f'buffer_load_dword v{FL}, off, s[36:39], 0 sc1')
            k('s_waitcnt vmcnt(0)')
            k(f'v_readfirstlane_b32 s{sT}, v{FL}')
            k(f's_cmp_ge_u32 s{sT}, {OPT.get("kvthr", 80)}')
            k(f's_cbranch_scc1 {LB}')
            k(f's_sub_u32 s{sT2}, s{sT2}, 1')
            k(f's_cmp_lg_u32 s{sT2}, 0')
            k(f's_cbranch_scc1 {L1}')
            c_, t_, w_, a0, a1 = STG, STG + 1, STG + 2, STG + 3, STG + 4
            for j in range(10):
                L2 = k.lab('fb')
                k(f'v_mov_b32 v{a0}, 0'); k(f'v_mov_b32 v{a1}, 0')
                k(f's_mov_b32 s{sT}, 0'); k(f's_mov_b32 s{sT2}, 0')
                k(f'{L2}:')
                k(f'buffer_load_ushort v{c_}, off, s[24:27], s{sT2}')
                k(f'buffer_load_dword v{w_}, v{vL4}, s[48:51], s{sT} offen offset:{j*256}')
                k('s_waitcnt vmcnt(0)')
                k(f'v_lshlrev_b32 v{c_}, 16, v{c_}')
                k(f'v_mul_f32 v{t_}, {LOG2E}, v{c_}')
                k(f'v_exp_f32 v{t_}, -v{t_}')
                k(f'v_add_f32 v{t_}, 1.0, v{t_}')
                k(f'v_rcp_f32 v{t_}, v{t_}')
                k(f'v_mul_f32 v{c_}, v{c_}, v{t_}')
                k(f'v_cvt_pk_bf16_f32 v{c_}, v{c_}, v{c_}')
                k(f'v_lshlrev_b32 v{c_}, 16, v{c_}')
                k(f'v_lshlrev_b32 v{t_}, 16, v{w_}')
                k(f'v_fmac_f32 v{a0}, v{t_}, v{c_}')
                k(f'v_and_b32 v{t_}, 0xffff0000, v{w_}')
                k(f'v_fmac_f32 v{a1}, v{t_}, v{c_}')
                k(f's_add_u32 s{sT2}, s{sT2}, 2')
                k(f's_add_u32 s{sT}, s{sT}, 7680')
                k(f's_cmp_lt_u32 s{sT2}, 1280')
                k(f's_cbranch_scc1 {L2}')
                if j >= 5:
                    rne2(k, t_, a0, a1)
                    k(f'v_add_f32 v{a0}, 1.0, v{a0}'); k(f'v_add_f32 v{a1}, 1.0, v{a1}')
                k(f'v_cvt_pk_bf16_f32 v{MD[j]}, v{a0}, v{a1}')
            k(f's_branch {LC}')
        rare.append(blk)
        ln = [lambda: k(f's_waitcnt vmcnt({vm.cnt("x")})')]
        for j in range(5):
            ln += [f'v_lshlrev_b32 v{X+2*j}, 16, v{XP+j}', f'v_and_b32 v{X+2*j+1}, 0xffff0000, v{XP+j}']
        def red(s, t):
            o = [f'v_add_f32_dpp v{s}, v{s}, v{s} row_ror:{r} row_mask:0xf bank_mask:0xf' for r in (1, 2, 4, 8)]
            o += [f'v_mov_b32 v{t}, v{s}', f'v_permlane32_swap_b32 v{s}, v{t}', f'v_add_f32 v{s}, v{s}, v{t}',
                  f'v_mov_b32 v{t}, v{s}', f'v_permlane16_swap_b32 v{s}, v{t}', f'v_add_f32 v{s}, v{s}, v{t}']
            return o
        def r2(d, a, b):
            return [f'v_cvt_pk_bf16_f32 v{d}, v{a}, v{b}', f'v_lshlrev_b32 v{a}, 16, v{d}', f'v_and_b32 v{b}, 0xffff0000, v{d}']
        s_, q_, m_ = U0, U1, U2
        ln += [f'v_add_f32 v{s_}, v{X}, v{X+1}', f'v_add_f32 v{q_}, v{X+2}, v{X+3}']
        for i in range(4, 10, 2): ln += [f'v_add_f32 v{s_}, v{s_}, v{X+i}', f'v_add_f32 v{q_}, v{q_}, v{X+i+1}']
        ln += [f'v_add_f32 v{s_}, v{s_}, v{q_}'] + red(s_, q_) + [f'v_mul_f32 v{m_}, 0x3acccccd, v{s_}']
        for i in range(10):
            acc = s_ if i % 2 == 0 else q_
            tt = XP + (i & 1)
            ln += [f'v_sub_f32 v{tt}, v{X+i}, v{m_}', (f'v_mul_f32 v{acc}, v{tt}, v{tt}' if i < 2 else f'v_fmac_f32 v{acc}, v{tt}, v{tt}')]
        ln += [f'v_add_f32 v{s_}, v{s_}, v{q_}'] + red(s_, q_) + [f'v_mul_f32 v{s_}, 0x3acccccd, v{s_}']
        ln += r2(q_, s_, m_)
        ln += [f'v_add_f32 v{s_}, 0x3727c5ac, v{s_}', f'v_cvt_pk_bf16_f32 v{s_}, v{s_}, v{s_}', f'v_lshlrev_b32 v{s_}, 16, v{s_}',
               f'v_sqrt_f32 v{s_}, v{s_}', f'v_cvt_pk_bf16_f32 v{s_}, v{s_}, v{s_}', f'v_lshlrev_b32 v{s_}, 16, v{s_}', f'v_rcp_f32 v{s_}, v{s_}']
        for i in range(0, 10, 2):
            a, b = X + i, X + i + 1; d = XP + i // 2
            ln += [f'v_sub_f32 v{a}, v{a}, v{m_}', f'v_sub_f32 v{b}, v{b}, v{m_}'] + r2(d, a, b)
            ln += [f'v_mul_f32 v{a}, v{a}, v{s_}', f'v_mul_f32 v{b}, v{b}, v{s_}', f'v_cvt_pk_bf16_f32 v{d}, v{a}, v{b}']
        ln += [f'v_lshrrev_b32 v{T1}, 2, v0', f'v_lshlrev_b32 v{T1}, 9, v{T1}', f'v_and_b32 v{s_}, 3, v0', f'v_lshl_add_u32 v{T1}, v{s_}, 2, v{T1}']
        XL = OPT.get('kvxl', 13)
        nsp = OPT.get('kvsp', 100)
        add(XL, ln[:nsp])
        add(OPT.get('kvflag', 45), [flg])
        add(XL, ln[nsp:] + ['LNEND'])
        add(OPT.get('kvm1', 61), m1 + ['M1END', 'NEEDBAR'] + part2(False))
        add(OPT.get('kvchk', 124), [chk])
        SP = OPT.get('kvss', 6)
        sq = [(131 + SP * i, f) for i, f in enumerate(stq)]
        ap = [lambda: k(f's_waitcnt vmcnt({vm.cnt("md")})')]
        for j in range(5):
            a, b, c, d = [120 + 4 * (j & 1) + i for i in range(4)]
            ap += [f'v_lshlrev_b32 v{a}, 16, v{XP+j}', f'v_and_b32 v{b}, 0xffff0000, v{XP+j}',
                   f'v_lshlrev_b32 v{c}, 16, v{MD[5+j]}', f'v_and_b32 v{d}, 0xffff0000, v{MD[5+j]}',
                   f'v_mul_f32 v{a}, v{a}, v{c}', f'v_mul_f32 v{b}, v{b}, v{d}'] + r2(c, a, b)
            ap += [f'v_lshlrev_b32 v{c}, 16, v{MD[j]}', f'v_and_b32 v{d}, 0xffff0000, v{MD[j]}',
                   f'v_add_f32 v{a}, v{a}, v{c}', f'v_add_f32 v{b}, v{b}, v{d}', f'v_cvt_pk_bf16_f32 v{XP+j}, v{a}, v{b}']
            def f(j=j):
                k(f's_add_u32 s{sT}, s{sHO}, {j*8192}')
                k(f'buffer_store_dword v{XP+j}, v{T1}, s[44:47], s{sT} offen'); vm.issue()
            ap.append(f)
        add(OPT.get('kvap', 157), ap + ['APEND'])
        add(194, pack(0, 64) + pack(1, 72))
        SP2 = OPT.get('kvss2', 12)
        sq += [(199 + SP2 * i, f) for i, f in enumerate(store(64, 1, 0) + store(72, 1, 1))]

        PF = OPT.get('kvpf', 6); D = OPT.get('kvd', 3); NV = OPT.get('kvnv', 4)
        def chunk_addr(j):
            g, w = j >> 3, j & 7
            return w * 12288 + [8192, 0, 4096][g] if g < 3 else 131072 + w * 4096
        def wread(n):
            r = RG + 4 * (n % NR)
            for qd in range(2):
                if n < 128:
                    s, ks, nb = n >> 4, (n >> 2) & 3, n & 3
                    vb, off = vTA, (s % 3) * 16384 + (4 * ks + qd) * 1024 + nb * 256
                else:
                    m = n - 128; j, nb = m >> 1, m & 1
                    a = chunk_addr(j >> 1) + (j & 1) * 2048 + qd * 512 + nb * 256
                    vb, off = vTB + (a >> 16), a & 0xffff
                k(f'ds_read_b64_tr_b16 v[{r+2*qd}:{r+2*qd+1}], v{vb} offset:{off}'); lg.issue(('f', n))
        def cread(s):
            for ks in range(4):
                r = CF + 4 * (4 * s + ks)
                k(f'ds_read_b128 v[{r}:{r+3}], v{vCr+ks} offset:{(s % 3) * 4096}'); lg.issue(('cf', 4 * s + ks))
        bounds = [16 * s for s in range(8)] + [128, 160, 192, 224]
        synced = set()
        qd_ = []
        barcount = [0]; mwr_bar = [None]
        def sync(b):
            lstamp(k, f'p{b}', 63); lg.waited(0 if OPT.get('lst') else 99)
            if b < 128:
                s = b >> 4
                c = min(vm.cnt(('c', s)), vm.cnt(('w', s)))
                k(f's_waitcnt vmcnt({c}) lgkmcnt(0)'); lg.waited(0)
            else:
                g = (b - 128) >> 5
                k(f's_waitcnt vmcnt({vm.cnt(("g", g))})')
            lstamp(k, f'w{b}', 63)
            k('s_barrier')
            lstamp(k, f'b{b}', 63)
            synced.add(b)
            if lg.is_done('mwr'): mwr_bar[0] = 1
            if b < 128:
                cread(s)
                if s == OPT.get('kvfl', 6): qd_.append(('f', None, fl))
                if s == 0:
                    qd_.append(('x', None, xl))
                    for s2 in range(PRO, 3):
                        for f in wdma(s2) + cdma(s2): qd_.append(('w', None, f))
                if s == OPT.get('kvml', 2): qd_.append(('m', None, modloads))
                if s >= 1 and s + 2 < 8:
                    for f in wdma(s + 2): qd_.append(('w', None, f))
                tag = ('cf', 4 * s + 3)
                if s + 3 < 8:
                    for f in cdma(s + 3): qd_.append(('c', tag, f))
                else:
                    for f in gdma(s - 5): qd_.append(('g', tag, f))
                if s == 7:
                    for f in gdma(3): qd_.append(('g', None, f))
        nr = [0]
        def reads_upto(lim):
            while nr[0] < 256 and nr[0] <= lim:
                if nr[0] in bounds and nr[0] not in synced: break
                wread(nr[0]); nr[0] += 1
        sync(0)
        stamp(k, 1)
        reads_upto(PF - 1)
        for n in range(256):
            if n < 128: t, cf = n & 3, n >> 2
            else: t, cf = ((n - 128) >> 6) * 2 + (n & 1), ((n - 128) >> 1) & 31
            first = n < 4 or n in (128, 129, 192, 193)
            if n == 128:
                for x in pack(0, STG): k(x)
            if n == 129:
                for x in pack(2, 96) + pack(1, 104): k(x)
            if n == 130:
                for x in pack(3, 112): k(x)
            tags = [('f', n)]
            if n < 128: tags.append(('cf', cf))
            if not all(lg.is_done(x) for x in tags):
                c = lg.cnt(*tags); k(f's_waitcnt lgkmcnt({c})'); lg.waited(c)
            a = ACC + 16 * t; r = RG + 4 * (n % NR); c = CF + 4 * cf
            Wf = f'v[{r}:{r+3}]'; Cf = f'v[{c}:{c+3}]'
            A, B = (Cf, Wf) if isV else (Wf, Cf)
            k(f'v_mfma_f32_32x32x16_bf16 v[{a}:{a+15}], {A}, {B}, ' + ('0' if first else f'v[{a}:{a+15}]'))
            if n + D + 1 in bounds: sync(n + D + 1)
            reads_upto(n + PF)
            if qd_ and (qd_[0][1] is None or lg.is_done(qd_[0][1])): qd_.pop(0)[2]()
            c = 0
            if sq and sq[0][0] <= n: sq.pop(0)[1](); c = 2
            if n == 190: assert len(sq) == 4
            if n == 198: assert not qv
            while qv and qv[0][0] <= n and c < NV:
                it = qv[0][1]
                if it == 'NEEDBAR':
                    if mwr_bar[0] is None: break
                    qv.pop(0); continue
                qv.pop(0)
                if isinstance(it, str) and it.endswith('END'):
                    print(it, n); assert n < {'LNEND': 75, 'APEND': 190, 'M1END': 91, 'L2END': 107, 'E2END': 12}[it]; continue
                if it == 'GAP': break
                if callable(it): it(); c += 2
                else: k(it); c += 1
            if n in (130, 136, 144, 176, 200, 208): lstamp(k, f'n{n}', 63); lg.waited(0 if OPT.get('lst') else 99)
            if n in (127, 191) and OPT.get('kvst'): stamp(k, 4 + (n >> 7))
        assert not qv and not qd_ and not sq
        stamp(k, 2)
        lstamp(k, 'end', 63)
        for x in pack(2, 96): k(x)
        for f in store(96, 1, 2): f()
        for x in pack(3, 112): k(x)
        for f in store(112, 1, 3): f()
        if OPT.get('stamp'):
            k('s_waitcnt vmcnt(0)')
            stamp(k, 3)
            k(f's_mov_b32 s24, s{sW}')
            stamp_out(k, 6 if OPT.get('kvst') else 4, 's24')
        if OPT.get('lst'):
            lstamp(k, 'sti', 63)
            k('s_waitcnt vmcnt(0)')
            lstamp(k, 'std', 63)
            k(f's_mov_b32 s24, s{sW}')
            lstamp_out(k, 63, 's24', 1)
        k('s_endpgm')
    variant(False)
    k(f'{LV}:')
    variant(True)
    for r in rare: r()
    return k, ('kv_kernel', 256, 512, 163840)
```

```python
import sys
sys.path.insert(0, 'work')
from asmlib import *
import os, json
OPT = json.loads(os.environ.get('OPT', '{}'))

WS_MOD = 0x0
WS_MODB = 0x8000
WS_R   = 0x10000
WS_ACT = 0x20000
WS_IDX = 0x30000
WS_H1  = 0x100000
WS_X1  = 0x400000
WS_H2  = 0x700000
WS_KF  = 0x1000000
WS_VF  = 0x2000000
WS_CTX = 0x3000000
WS_PART = 0x4000000
WS_SIZE = 268435456

A_X, A_CKV, A_WQ, A_WUK, A_WUV, A_WO, B_X, B_WR, B_WG, B_WU, B_WD, IN_C, W_MOD, OUT, DBG, WS = range(16)
SIZES = {A_X: 2048*640*2, A_CKV: 2048*512*2, A_WQ: 640*4096*2, A_WUK: 512*4096*2, A_WUV: 512*4096*2,
         A_WO: 4096*640*2, B_X: 2048*640*2, B_WR: 1280, B_WG: 640*1728*2, B_WU: 640*1728*2, B_WD: 1728*640*2,
         IN_C: 1280, W_MOD: 640*3840*2, OUT: 2048*640*2, DBG: 256, WS: WS_SIZE}

def srds(k, lst, tmp=90):
    for (sb, slot, off, nb) in lst:
        k(f's_load_dwordx2 s[{sb}:{sb+1}], s[0:1], {slot*8}')
    k('s_waitcnt lgkmcnt(0)')
    for (sb, slot, off, nb) in lst:
        if off:
            k(f's_add_u32 s{sb}, s{sb}, {off}')
            k(f's_addc_u32 s{sb+1}, s{sb+1}, 0')
        k(f's_mov_b32 s{sb+2}, {nb}')
        k(f's_mov_b32 s{sb+3}, 0x00020000')

def guard(k, n):
    L = k.lab('go')
    k(f's_cmp_lt_u32 s2, {n}')
    k(f's_cbranch_scc1 {L}')
    k('s_endpgm')
    k(f'{L}:')

LOG2E = 0x3fb8aa3b

def rne2(k, d, a, b):
    k(f'v_cvt_pk_bf16_f32 v{d}, v{a}, v{b}')
    k(f'v_lshlrev_b32 v{a}, 16, v{d}')
    k(f'v_and_b32 v{b}, 0xffff0000, v{d}')

def k_mod():
    k = Kernel('mod_kernel')
    srds(k, [(4, IN_C, 0, SIZES[IN_C]), (8, W_MOD, 0, SIZES[W_MOD]), (12, WS, WS_MOD, 3840*4)])
    guard(k, 240)
    k('v_lshrrev_b32 v1, 1, v0')
    k('v_and_b32 v2, 1, v0')
    k('v_lshlrev_b32 v3, 1, v1')
    k('s_movk_i32 s16, 7680')
    k('v_mul_lo_u32 v4, v1, s16')
    k('v_lshl_add_u32 v4, v2, 4, v4')
    k('s_lshl_b32 s17, s2, 5')
    for p in range(5):
        k(f'buffer_load_ushort v{10+p}, v3, s[4:7], 0 offen offset:{p*256}')
    for p in range(5):
        k(f's_add_u32 s18, s17, {p*128*7680}')
        k(f'buffer_load_dwordx4 v[{16+4*p}:{19+4*p}], v4, s[8:11], s18 offen')
    k('s_waitcnt vmcnt(5)')
    k(f's_mov_b32 s19, {LOG2E}')
    for p in range(5):
        r = 10 + p
        k(f'v_lshlrev_b32 v{r}, 16, v{r}')
        k(f'v_mul_f32 v5, s19, v{r}')
        k(f'v_exp_f32 v5, -v5')
        k(f'v_add_f32 v5, 1.0, v5')
        k(f'v_rcp_f32 v5, v5')
        k(f'v_mul_f32 v{r}, v{r}, v5')
        k(f'v_cvt_pk_bf16_f32 v{r}, v{r}, v{r}')
        k(f'v_lshlrev_b32 v{r}, 16, v{r}')
    for j in range(8):
        k(f'v_mov_b32 v{40+j}, 0')
    for p in range(5):
        k(f's_waitcnt vmcnt({4-p})')
        for j in range(4):
            w = 16 + 4*p + j
            k(f'v_lshlrev_b32 v5, 16, v{w}')
            k(f'v_and_b32 v6, 0xffff0000, v{w}')
            k(f'v_fmac_f32 v{40+2*j}, v5, v{10+p}')
            k(f'v_fmac_f32 v{41+2*j}, v6, v{10+p}')
    for ror in (2, 4, 8):
        for j in range(8):
            k(f'v_add_f32_dpp v{40+j}, v{40+j}, v{40+j} row_ror:{ror} row_mask:0xf bank_mask:0xf')
    k('v_and_b32 v5, 15, v0')
    k('v_lshrrev_b32 v6, 4, v0')
    k('v_lshlrev_b32 v6, 6, v6')
    k('v_lshl_add_u32 v6, v2, 5, v6')
    k('v_cmp_gt_u32 vcc, 2, v5')
    k('s_and_saveexec_b64 s[20:21], vcc')
    k('ds_write_b128 v6, v[40:43]')
    k('ds_write_b128 v6, v[44:47] offset:16')
    k('s_mov_b64 exec, s[20:21]')
    k('s_waitcnt lgkmcnt(0)')
    k('s_barrier')
    k('v_cmp_gt_u32 vcc, 16, v0')
    k('s_and_saveexec_b64 s[20:21], vcc')
    L = k.lab('end')
    k(f's_cbranch_execz {L}')
    k('v_lshlrev_b32 v5, 2, v0')
    for j in range(16):
        k(f'ds_read_b32 v{10+j}, v5 offset:{j*64}')
    k('s_waitcnt lgkmcnt(0)')
    for j in range(1, 16):
        k(f'v_add_f32 v10, v10, v{10+j}')
    k('v_cvt_pk_bf16_f32 v10, v10, v10')
    k('v_lshlrev_b32 v10, 16, v10')
    k('s_lshl_b32 s17, s2, 6')
    k('buffer_store_dword v10, v5, s[12:15], s17 offen')
    k(f'{L}:')
    k('s_endpgm')
    return k, ('mod_kernel', 240, 256, 1024)

def ln_core(k, x0, t0):
    s, q, m, tt = t0, t0+1, t0+2, t0+3
    k(f'v_add_f32 v{s}, v{x0}, v{x0+1}')
    k(f'v_add_f32 v{q}, v{x0+2}, v{x0+3}')
    for i in range(4, 40, 2):
        k(f'v_add_f32 v{s}, v{s}, v{x0+i}')
        k(f'v_add_f32 v{q}, v{q}, v{x0+i+1}')
    k(f'v_add_f32 v{s}, v{s}, v{q}')
    for ror in (1, 2, 4, 8):
        k(f'v_add_f32_dpp v{s}, v{s}, v{s} row_ror:{ror} row_mask:0xf bank_mask:0xf')
    k(f'v_mul_f32 v{m}, 0x3acccccd, v{s}')
    k(f'v_sub_f32 v{tt}, v{x0}, v{m}')
    k(f'v_mul_f32 v{s}, v{tt}, v{tt}')
    k(f'v_sub_f32 v{tt}, v{x0+1}, v{m}')
    k(f'v_mul_f32 v{q}, v{tt}, v{tt}')
    for i in range(2, 40, 2):
        k(f'v_sub_f32 v{tt}, v{x0+i}, v{m}')
        k(f'v_fmac_f32 v{s}, v{tt}, v{tt}')
        k(f'v_sub_f32 v{tt}, v{x0+i+1}, v{m}')
        k(f'v_fmac_f32 v{q}, v{tt}, v{tt}')
    k(f'v_add_f32 v{s}, v{s}, v{q}')
    for ror in (1, 2, 4, 8):
        k(f'v_add_f32_dpp v{s}, v{s}, v{s} row_ror:{ror} row_mask:0xf bank_mask:0xf')
    k(f'v_mul_f32 v{s}, 0x3acccccd, v{s}')
    rne2(k, tt, s, m)
    k(f'v_add_f32 v{s}, 0x3727c5ac, v{s}')
    k(f'v_cvt_pk_bf16_f32 v{s}, v{s}, v{s}')
    k(f'v_lshlrev_b32 v{s}, 16, v{s}')
    k(f'v_sqrt_f32 v{s}, v{s}')
    k(f'v_cvt_pk_bf16_f32 v{s}, v{s}, v{s}')
    k(f'v_lshlrev_b32 v{s}, 16, v{s}')
    k(f'v_rcp_f32 v{s}, v{s}')
    for i in range(0, 40, 2):
        a, b = x0+i, x0+i+1
        k(f'v_sub_f32 v{a}, v{a}, v{m}')
        k(f'v_sub_f32 v{b}, v{b}, v{m}')
        rne2(k, tt, a, b)
        k(f'v_mul_f32 v{a}, v{a}, v{s}')
        k(f'v_mul_f32 v{b}, v{b}, v{s}')
        rne2(k, tt, a, b)

def k_ln1():
    k = Kernel('ln1_kernel')
    srds(k, [(4, A_X, 0, SIZES[A_X]), (8, WS, WS_MOD, 3840*4), (12, WS, WS_H1, 2048*640*2)])
    guard(k, 128)
    k('v_and_b32 v1, 15, v0')
    k('v_lshrrev_b32 v2, 4, v0')
    k('s_lshl_b32 s16, s2, 4')
    k('v_add_u32 v2, s16, v2')
    k('s_movk_i32 s17, 1280')
    k('v_mul_lo_u32 v3, v2, s17')
    k('v_lshl_add_u32 v3, v1, 4, v3')
    for j in range(5):
        k(f'buffer_load_dwordx4 v[{8+4*j}:{11+4*j}], v3, s[4:7], 0 offen offset:{256*j}')
    k('v_lshlrev_b32 v4, 5, v1')
    for j in range(5):
        k(f'buffer_load_dwordx4 v[{80+8*j}:{83+8*j}], v4, s[8:11], 0 offen offset:{512*j}')
        k(f'buffer_load_dwordx4 v[{84+8*j}:{87+8*j}], v4, s[8:11], 0 offen offset:{512*j+16}')
    k('s_movk_i32 s18, 2560')
    for j in range(5):
        k(f'buffer_load_dwordx4 v[{120+8*j}:{123+8*j}], v4, s[8:11], s18 offen offset:{512*j}')
        k(f'buffer_load_dwordx4 v[{124+8*j}:{127+8*j}], v4, s[8:11], s18 offen offset:{512*j+16}')
    k('s_waitcnt vmcnt(20)')
    X = 32
    for i in range(20):
        k(f'v_lshlrev_b32 v{X+2*i}, 16, v{8+i}')
        k(f'v_and_b32 v{X+2*i+1}, 0xffff0000, v{8+i}')
    ln_core(k, X, 28)
    k('s_waitcnt vmcnt(0)')
    for i in range(0, 40, 2):
        a, b = X+i, X+i+1
        ca, cb = 120+i, 121+i
        k(f'v_add_f32 v{ca}, 1.0, v{ca}')
        k(f'v_add_f32 v{cb}, 1.0, v{cb}')
        rne2(k, 28, ca, cb)
        k(f'v_mul_f32 v{a}, v{a}, v{ca}')
        k(f'v_mul_f32 v{b}, v{b}, v{cb}')
        rne2(k, 28, a, b)
        k(f'v_add_f32 v{a}, v{a}, v{80+i}')
        k(f'v_add_f32 v{b}, v{b}, v{81+i}')
        k(f'v_cvt_pk_bf16_f32 v{8+i//2}, v{a}, v{b}')
    k('v_lshrrev_b32 v5, 5, v2')
    k('s_mov_b32 s19, 40960')
    k('v_mul_lo_u32 v5, v5, s19')
    k('v_and_b32 v6, 31, v2')
    k('v_lshl_add_u32 v5, v6, 4, v5')
    k('v_lshl_add_u32 v5, v1, 9, v5')
    for j in range(5):
        k(f's_mov_b32 s20, {8192*j}')
        k(f'buffer_store_dwordx4 v[{8+4*j}:{11+4*j}], v5, s[12:15], s20 offen')
    k('s_endpgm')
    return k, ('ln1_kernel', 128, 256, 0)

if __name__ == '__main__':
    if OPT.get('oldkv'):
        import gen2
        ks = [k_mod(), k_ln1()] + gen2.kernels()
    else:
        import gen6, gen3
        ks = [gen6.k_kv2()] + gen3.kernels()
    build([a for a, b in ks], [b for a, b in ks], os.environ.get('OUTS', 'adaLN_cond__compressed_kv_cla__moe_arch_mod__prompt.s'))
```
